```python
import torch

def _softmax(x, axis=-1):
    return torch.softmax(x, dim=axis)
def _gelu(x):
    return torch.nn.functional.gelu(x, approximate="tanh")
def _silu(x):
    return torch.nn.functional.silu(x)
def _sigmoid(x):
    return torch.sigmoid(x)
def _layernorm(x, axis=-1, eps=1e-5):
    m = x.mean(dim=axis, keepdim=True)
    v = x.var(dim=axis, keepdim=True, unbiased=False)
    return (x - m) / torch.sqrt(v + eps)
def _scatter_add(tgt, idx, src, axis=0):
    return tgt.clone().index_add_(axis, idx, src)
def _segment_sum(src, seg, n):
    out = torch.zeros((n,) + src.shape[1:], dtype=src.dtype)
    return out.index_add_(0, seg, src)
def _pad(x, pw):
    flat = tuple(v for pair in reversed(pw) for v in pair)
    return torch.nn.functional.pad(x, flat)

kernel_name = 'parallel_sum__sliding_block__mixer_channel_mlp__prompt'

def setup_inputs():

    _w = (lambda a: (lambda t: t.to(torch.bfloat16) if t.is_floating_point() else t)(torch.as_tensor(a)))
    def _A_setup():
        B, S, D = 1, 2048, 1024
        return {
            "x": _w((lambda *s: torch.randn(*s, dtype=torch.bfloat16) * 0.05)(B, S, D)),
            "wqkv": _w((lambda *s: torch.randn(*s, dtype=torch.bfloat16) * 0.05)(D, 3 * D)),
            "wo": _w((lambda *s: torch.randn(*s, dtype=torch.bfloat16) * 0.05)(D, D)),
        }
    _A_in = _A_setup()

    def _B_setup():
        B, S, D, F = 1, 2048, 1024, 3584
        return {
            "x": _w((lambda *s: torch.randn(*s, dtype=torch.bfloat16) * 0.05)(B, S, D)),
            "w1": _w((lambda *s: torch.randn(*s, dtype=torch.bfloat16) * 3.2)(D, F) * (D ** -0.5)),
            "b1": _w((lambda *s: torch.randn(*s, dtype=torch.bfloat16) * 1.6)(F)),
            "w2": _w((lambda *s: torch.randn(*s, dtype=torch.bfloat16) * 0.4)(F, D) * (F ** -0.5)),
            "b2": _w((lambda *s: torch.randn(*s, dtype=torch.bfloat16) * 0.8)(D)),
        }
    _B_in = _B_setup()

    return {
        "A_x": _A_in["x"],
        "A_wqkv": _A_in["wqkv"],
        "A_wo": _A_in["wo"],
        "B_x": _B_in["x"],
        "B_w1": _B_in["w1"],
        "B_b1": _B_in["b1"],
        "B_w2": _B_in["w2"],
        "B_b2": _B_in["b2"],
    }

def reference(A_x, A_wqkv, A_wo, B_x, B_w1, B_b1, B_w2, B_b2):
    def _A_ref(x, wqkv, wo):
        B, S, D = x.shape
        H = 32; Dh = D // H; W = 256
        qkv = (lambda x, *d: x.permute(*d))((x @ wqkv).reshape(B, S, 3, H, Dh), 2, 0, 3, 1, 4)
        q, k, v = qkv[0], qkv[1], qkv[2]
        scores = torch.einsum("bhqd,bhkd->bhqk", q, k) * (Dh ** -0.5)
        idx = torch.arange(S)
        mask = (idx[:, None] - idx[None, :] >= 0) & (idx[:, None] - idx[None, :] < W)
        scores = torch.where(mask[None, None], scores, -1e9)
        p = _softmax(scores, axis=-1)
        o = torch.einsum("bhqk,bhkd->bhqd", p, v)
        return (lambda x, *d: x.permute(*d))(o, 0, 2, 1, 3).reshape(B, S, D) @ wo

    def _B_ref(x, w1, b1, w2, b2):
        y = _layernorm(x, axis=-1)
        h = _gelu(torch.einsum("bsd,df->bsf", y, w1) + b1)
        return torch.einsum("bsf,fd->bsd", h, w2) + b2

    x = A_x
    xn = _layernorm(x, axis=-1)
    return x + _A_ref(xn, A_wqkv, A_wo) + _B_ref(xn, B_w1, B_b1, B_w2, B_b2)
```

```python
class Asm:
    def __init__(self):
        self.lines = []
        self._lab = 0
    def __call__(self, s):
        self.lines.append("    " + s)
    def raw(self, s):
        self.lines.append(s)
    def label(self, name):
        self.lines.append(name + ":")
    def newlabel(self, base):
        self._lab += 1
        return "L_%s_%d" % (base, self._lab)
    def text(self):
        return "\n".join(self.lines) + "\n"

def v(i, n=1):
    return "v%d" % i if n == 1 else "v[%d:%d]" % (i, i + n - 1)
def s(i, n=1):
    return "s%d" % i if n == 1 else "s[%d:%d]" % (i, i + n - 1)
def a(i, n=1):
    return "a%d" % i if n == 1 else "a[%d:%d]" % (i, i + n - 1)

import struct
def f32(x):
    return "0x%08x" % struct.unpack("<I", struct.pack("<f", x))[0]

def kernel_begin(A, name):
    A.raw(".text")
    A.raw(".globl %s" % name)
    A.raw(".p2align 8")
    A.raw(".type %s,@function" % name)
    A.label(name)

def kernel_desc(A, name, nvgpr, nsgpr=96, accum=None):
    if accum is None:
        accum = (nvgpr + 3) // 4 * 4
    A.raw('.section .rodata,"a"')
    A.raw(".p2align 6")
    A.raw(".amdhsa_kernel %s" % name)
    A.raw("  .amdhsa_next_free_vgpr %d" % nvgpr)
    A.raw("  .amdhsa_next_free_sgpr %d" % nsgpr)
    A.raw("  .amdhsa_accum_offset %d" % accum)
    A.raw("  .amdhsa_group_segment_fixed_size 0")
    A.raw("  .amdhsa_kernarg_size 88")
    A.raw("  .amdhsa_user_sgpr_count 2")
    A.raw("  .amdhsa_user_sgpr_kernarg_segment_ptr 1")
    A.raw("  .amdhsa_system_sgpr_workgroup_id_x 1")
    A.raw("  .amdhsa_float_denorm_mode_32 3")
    A.raw("  .amdhsa_float_denorm_mode_16_64 3")
    A.raw(".end_amdhsa_kernel")

def srd(A, d, plo, nbytes, off=0):
    if off:
        A("s_add_u32 %s, %s, 0x%x" % (s(d), s(plo), off))
        A("s_addc_u32 %s, %s, 0" % (s(d + 1), s(plo + 1)))
    else:
        A("s_mov_b32 %s, %s" % (s(d), s(plo)))
        A("s_mov_b32 %s, %s" % (s(d + 1), s(plo + 1)))
    A("s_mov_b32 %s, 0x%x" % (s(d + 2), nbytes))
    A("s_mov_b32 %s, 0x00020000" % s(d + 3))

def interleave(A, mfmas, fillers, first=0, last=None):
    n = len(mfmas)
    if last is None:
        last = n - 1
    slots = [[] for _ in range(n)]
    nf = len(fillers)
    for i, f in enumerate(fillers):
        pos = first + (i * (last - first + 1)) // max(nf, 1)
        slots[min(pos, n - 1)].append(f)
    for i, m in enumerate(mfmas):
        A(m)
        for f in slots[i]:
            for ins in f:
                A(ins)
```

```python
import sys, math, os
OPT = set(os.environ.get("OPT", "").split(","))
from asmlib import *

MB_ = 1 << 20
WS_XN, WS_Y, WS_Q, WS_K, WS_VT, WS_ACT = 0, 4 * MB_, 8 * MB_, 12 * MB_, 16 * MB_, 20 * MB_
ACT_BYTES = 144 * 128 * 1024
OUTSC = " sc1"
NAME = "parallel_sum__sliding_block__mixer_channel_mlp__prompt"

def xlane_sum(A, x, t, op="v_add_f32", ror8=True):
    if ror8:
        A("s_nop 1")
        A("%s_dpp %s, %s, %s row_ror:8 row_mask:0xf bank_mask:0xf" % (op, v(x), v(x), v(x)))
    A("v_mov_b32 %s, %s" % (v(t), v(x)))
    A("s_nop 1")
    A("v_permlane16_swap_b32 %s, %s" % (v(x), v(t)))
    A("%s %s, %s, %s" % (op, v(x), v(x), v(t)))
    A("v_mov_b32 %s, %s" % (v(t), v(x)))
    A("s_nop 1")
    A("v_permlane32_swap_b32 %s, %s" % (v(x), v(t)))
    A("%s %s, %s, %s" % (op, v(x), v(x), v(t)))

def rnd_bf16(A, x):
    A("v_cvt_pk_bf16_f32 %s, %s, %s" % (v(x), v(x), v(x)))
    A("v_lshlrev_b32 %s, 16, %s" % (v(x), v(x)))

def stamp(A, i):
    if "stamp" not in OPT: return
    A("s_memrealtime s[60:61]")
    A("s_memtime s[62:63]")
    A("s_waitcnt lgkmcnt(0)")
    A("s_mov_b32 s%d, s60" % (70 + i))
    A("s_mov_b32 s%d, s62" % (80 + i))

def stamp_out(A, kidx, n, wsp, wave, last_wait=True):
    if "stamp" not in OPT: return
    stamp(A, n - 2)
    A("s_waitcnt vmcnt(0)")
    stamp(A, n - 1)
    srd(A, 64, wsp, 1 << 20, 128 * MB_ + kidx * (1 << 18))
    A("s_lshl_b32 s60, s2, 3")
    A("s_add_u32 s60, s60, %s" % wave)
    A("s_lshl_b32 s60, s60, 6")
    A("v_mov_b32 v0, 0")
    for i in range(n):
        A("v_mov_b32 v1, s%d" % (70 + i))
        A("v_mov_b32 v2, s%d" % (80 + i))
        A("buffer_store_dword v1, v0, s[64:67], s60 offen offset:%d" % (4 * i))
        A("buffer_store_dword v2, v0, s[64:67], s60 offen offset:%d" % (32 + 4 * i))
        A("s_nop 1")

def gen_ln(A):
    name = "ln_kernel"
    kernel_begin(A, name)
    A("s_cmp_ge_u32 s2, 256")
    A("s_cbranch_scc1 L_ln_done")
    stamp(A, 0)
    A("s_load_dwordx2 s[4:5], s[0:1], 0")
    A("s_load_dwordx2 s[6:7], s[0:1], 80")
    A("v_and_b32 v1, 7, v0")
    A("v_bfe_u32 v2, v0, 3, 3")
    A("v_lshrrev_b32 v3, 6, v0")
    A("s_lshl_b32 s3, s2, 14")
    A("v_lshlrev_b32 v4, 11, v1")
    A("v_lshl_add_u32 v4, v3, 9, v4")
    A("v_lshl_add_u32 v4, v2, 4, v4")
    A("s_waitcnt lgkmcnt(0)")
    srd(A, 8, 4, 4 * MB_)
    srd(A, 12, 6, 8 * MB_)
    for i in range(4):
        A("buffer_load_dwordx4 %s, v4, s[8:11], s3 offen offset:%d" % (v(16 + 4 * i, 4), i * 128))
    A("v_lshrrev_b32 v5, 2, v2")
    A("v_lshl_add_u32 v5, v3, 3, v5")
    A("v_lshlrev_b32 v5, 17, v5")
    A("v_and_b32 v6, 3, v2")
    A("v_lshl_add_u32 v6, v6, 4, v1")
    A("v_lshl_add_u32 v5, v6, 4, v5")
    A("s_lshr_b32 s16, s2, 1")
    A("s_lshl_b32 s16, s16, 10")
    A("s_and_b32 s17, s2, 1")
    A("s_lshl_b32 s17, s17, 7")
    A("s_add_u32 s16, s16, s17")
    A("v_lshlrev_b32 v7, 4, v1")
    A("v_lshl_add_u32 v8, v3, 2, v7")
    A("s_mov_b32 s18, 0xffff0000")
    X = 32
    for i in range(4):
        A("s_waitcnt vmcnt(%d)" % (3 - i))
        for j in range(4):
            A("v_lshlrev_b32 %s, 16, %s" % (v(X + 8 * i + 2 * j), v(16 + 4 * i + j)))
            A("v_and_b32 %s, s18, %s" % (v(X + 8 * i + 2 * j + 1), v(16 + 4 * i + j)))
    def tree_sum(dst, regs_fn):
        pass
    A("v_add_f32 v9, %s, %s" % (v(X), v(X + 1)))
    A("v_add_f32 v10, %s, %s" % (v(X + 2), v(X + 3)))
    for i in range(4, 32, 2):
        A("v_add_f32 v9, v9, %s" % v(X + i))
        A("v_add_f32 v10, v10, %s" % v(X + i + 1))
    A("v_add_f32 v9, v9, v10")
    xlane_sum(A, 9, 10)
    A("ds_write_b32 v8, v9")
    A("s_waitcnt lgkmcnt(0)")
    A("s_barrier")
    A("ds_read_b128 v[12:15], v7")
    A("s_waitcnt lgkmcnt(0)")
    A("v_add_f32 v12, v12, v13")
    A("v_add_f32 v14, v14, v15")
    A("v_add_f32 v12, v12, v14")
    A("v_mul_f32 v11, %s, v12" % f32(1.0 / 1024))
    A("v_mov_b32 v9, 0")
    A("v_mov_b32 v10, 0")
    for i in range(0, 32, 2):
        A("v_sub_f32 v12, %s, v11" % v(X + i))
        A("v_sub_f32 v13, %s, v11" % v(X + i + 1))
        A("v_fmac_f32 v9, v12, v12")
        A("v_fmac_f32 v10, v13, v13")
    A("v_add_f32 v9, v9, v10")
    xlane_sum(A, 9, 10)
    A("ds_write_b32 v8, v9 offset:128")
    A("s_waitcnt lgkmcnt(0)")
    A("s_barrier")
    A("ds_read_b128 v[12:15], v7 offset:128")
    A("s_waitcnt lgkmcnt(0)")
    A("v_add_f32 v12, v12, v13")
    A("v_add_f32 v14, v14, v15")
    A("v_add_f32 v12, v12, v14")
    def finish_stats(mean, var):
        rnd_bf16(A, var)
        A("v_add_f32 %s, %s, %s" % (v(var), f32(1e-5), v(var)))
        rnd_bf16(A, var)
        A("v_sqrt_f32 %s, %s" % (v(var), v(var)))
        rnd_bf16(A, mean)
        rnd_bf16(A, var)
        A("v_rcp_f32 %s, %s" % (v(var), v(var)))
        A("s_nop 0")
    A("v_mul_f32 v12, %s, v12" % f32(1.0 / 1024))
    finish_stats(11, 12)
    for i in range(32):
        A("v_sub_f32 %s, %s, v11" % (v(X + i), v(X + i)))
        A("v_mul_f32 %s, %s, v12" % (v(X + i), v(X + i)))
    for i in range(16):
        A("v_cvt_pk_bf16_f32 %s, %s, %s" % (v(16 + i), v(X + 2 * i), v(X + 2 * i + 1)))
    for i in range(4):
        A("s_add_u32 s19, s16, 0x%x" % (WS_XN + i * 262144))
        A("buffer_store_dwordx4 %s, v5, s[12:15], s19 offen" % v(16 + 4 * i, 4))
    A("v_mov_b32 v9, 0")
    A("v_mov_b32 v10, 0")
    A("v_mov_b32 v13, 0")
    A("v_mov_b32 v14, 0")
    for i in range(16):
        A("v_lshlrev_b32 %s, 16, %s" % (v(X + 2 * i), v(16 + i)))
        A("v_and_b32 %s, s18, %s" % (v(X + 2 * i + 1), v(16 + i)))
        A("v_add_f32 v9, v9, %s" % v(X + 2 * i))
        A("v_add_f32 v13, v13, %s" % v(X + 2 * i + 1))
        A("v_fmac_f32 v10, %s, %s" % (v(X + 2 * i), v(X + 2 * i)))
        A("v_fmac_f32 v14, %s, %s" % (v(X + 2 * i + 1), v(X + 2 * i + 1)))
    A("v_add_f32 v9, v9, v13")
    A("v_add_f32 v10, v10, v14")
    xlane_sum(A, 9, 13)
    xlane_sum(A, 10, 13)
    A("ds_write_b32 v8, v9 offset:256")
    A("ds_write_b32 v8, v10 offset:384")
    A("s_waitcnt lgkmcnt(0)")
    A("s_barrier")
    A("ds_read_b128 v[12:15], v7 offset:256")
    A("ds_read_b128 v[64:67], v7 offset:384")
    A("s_waitcnt lgkmcnt(0)")
    A("v_add_f32 v12, v12, v13")
    A("v_add_f32 v14, v14, v15")
    A("v_add_f32 v12, v12, v14")
    A("v_mul_f32 v11, %s, v12" % f32(1.0 / 1024))
    A("v_add_f32 v64, v64, v65")
    A("v_add_f32 v66, v66, v67")
    A("v_add_f32 v64, v64, v66")
    A("v_mul_f32 v12, %s, v64" % f32(1.0 / 1024))
    A("v_fma_f32 v12, -v11, v11, v12")
    A("v_max_f32 v12, 0, v12")
    finish_stats(11, 12)
    for i in range(32):
        A("v_sub_f32 %s, %s, v11" % (v(X + i), v(X + i)))
        A("v_mul_f32 %s, %s, v12" % (v(X + i), v(X + i)))
    for i in range(16):
        A("v_cvt_pk_bf16_f32 %s, %s, %s" % (v(68 + i), v(X + 2 * i), v(X + 2 * i + 1)))
    for i in range(4):
        A("s_add_u32 s19, s16, 0x%x" % (WS_Y + i * 262144))
        A("buffer_store_dwordx4 %s, v5, s[12:15], s19 offen" % v(68 + 4 * i, 4))
    stamp_out(A, 0, 3, 6, "0")
    A.label("L_ln_done")
    A("s_endpgm")
    kernel_desc(A, name, 84, 96)
    return "; @launch kernel=%s grid=(256,1,1) block=(256,1,1) lds=512" % name

class Gemm:
    def __init__(self, A, tag, MB, NB, KS, R, S, acc, fr0, read_fn, dma_fn, L, swap_fn=None,
                 unroll=None, cnt=None, rd_last=None, dma_pos=None):
        self.__dict__.update(locals())
        self.FR = 4 * (MB + NB)
    def xf(self, st, mb): return self.fr0 + st * self.FR + 4 * mb
    def wf(self, st, nb): return self.fr0 + st * self.FR + 4 * self.MB + 4 * nb
    def accr(self, mb, nb): return self.acc + 4 * (mb * self.NB + nb)
    def mfmas(self, st):
        out = []
        for mb in range(self.MB):
            for nb in range(self.NB):
                c = v(self.accr(mb, nb), 4)
                w, x = v(self.wf(st, nb), 4), v(self.xf(st, mb), 4)
                if self.swap_fn and self.swap_fn(nb):
                    w, x = x, w
                out.append("v_mfma_f32_16x16x32_bf16 %s, %s, %s, %s" % (c, w, x, c))
        return out
    def period(self, p, slot_p, do_read, do_dma, vm, first=False, barrier=True):
        A, KS, R = self.A, self.KS, self.R
        n = self.MB * self.NB
        if barrier:
            A("s_waitcnt vmcnt(%d) lgkmcnt(0)" % vm if vm is not None else "s_waitcnt lgkmcnt(0)")
            A("s_barrier")
        dm = self.dma_fn(slot_p) if do_dma else []
        if "nodma" in OPT: dm = []
        if "nodmaw" in OPT: dm = [[i for i in f if "s[12:15]" not in i] for f in dm]
        if "nodmaa" in OPT: dm = [[i for i in f if "s[8:11]" not in i] for f in dm]
        nsub = KS if do_read else 1
        for u in range(nsub):
            g = (p + 1) * KS + u
            st_m = (g - 1) & 1
            rd = self.read_fn((slot_p + 1) % R, u, g & 1) if do_read else []
            if "noread" in OPT: rd = []
            if "read1" in OPT:
                if first: rd = rd + self.read_fn((slot_p + 1) % R, u, 1 - (g & 1))
                else: rd = []
            if "reada1" in OPT:
                if first: rd = rd + self.read_fn((slot_p + 1) % R, u, 1 - (g & 1))
                else: rd = [f for f in rd if "_tr_" in f[0]]
            if "notr" in OPT: rd = [f for f in rd if "_tr_" not in f[0]]
            d = dm[u * len(dm) // nsub:(u + 1) * len(dm) // nsub]
            if u > 0:
                A("s_waitcnt lgkmcnt(0)")
            if first and u == 0:
                for f in rd:
                    for i in f: A(i)
                continue
            rl = self.rd_last if self.rd_last is not None else n - 5
            slots = [[] for _ in range(n)]
            for i, f in enumerate(rd):
                slots[(i * (rl + 1)) // len(rd)].append(f)
            for i, f in enumerate(d):
                pos = ((2 * i + 1) * n) // (2 * len(d))
                slots[min(pos, n - 1)].append(f)
            for i, m in enumerate(self.mfmas(st_m)):
                if "nomfma" not in OPT: A(m)
                for f in slots[i]:
                    for ins in f: A(ins)
    def run(self):
        A, R, S, L = self.A, self.R, self.S, self.L
        U = self.unroll or R
        self.period(-1, (R - 1), True, False, (R - 1) * L, first=True)
        stamp(A, 1)
        nd = S - R
        assert nd % U == 0 and (U * self.KS) % 2 == 0 and U % R == 0
        lab = A.newlabel(self.tag + "_loop")
        A("s_mov_b32 %s, %d" % (s(self.cnt), nd // U))
        A.label(lab)
        for p in range(U):
            self.period(p, p % R, True, True, (R - 2) * L)
        if "wrapk" in OPT:
            import re
            for f in self.dma_fn(0):
                for i in f:
                    m = re.match(r"s_add_u32 (s3[67]), s3[67], (\S+)", i)
                    if m: A("s_sub_u32 %s, %s, %d" % (m.group(1), m.group(1), U * int(m.group(2), 0)))
        A("s_sub_u32 %s, %s, 1" % (s(self.cnt), s(self.cnt)))
        A("s_cmp_lg_u32 %s, 0" % s(self.cnt))
        A("s_cbranch_scc1 %s" % lab)
        for p in range(nd, S):
            rem = S - 2 - p
            if p < S - 1:
                self.period(p, p % R, True, False, min(R - 2, rem) * L)
            else:
                A("s_waitcnt lgkmcnt(0)")
                self.period(p, p % R, False, False, None, barrier=False)

def gelu4(A, x, t, sC0, sC1):
    for i in range(4): A("v_mul_f32 %s, %s, %s" % (v(t + i), v(x + i), v(x + i)))
    for i in range(4): A("v_fma_f32 %s, %s, %s, %s" % (v(t + i), v(t + i), s(sC1), v(sC0)))
    for i in range(4): A("v_mul_f32 %s, %s, %s" % (v(t + i), v(t + i), v(x + i)))
    for i in range(4): A("v_exp_f32 %s, %s" % (v(t + i), v(t + i)))
    for i in range(4): A("v_add_f32 %s, 1.0, %s" % (v(t + i), v(t + i)))
    for i in range(4): A("v_rcp_f32 %s, %s" % (v(t + i), v(t + i)))
    for i in range(4): A("v_mul_f32 %s, %s, %s" % (v(x + i), v(x + i), v(t + i)))

def tr_base(A, dst, lane, t):
    A("v_lshrrev_b32 %s, 2, %s" % (v(dst), v(lane)))
    A("v_lshlrev_b32 %s, 6, %s" % (v(dst), v(dst)))
    A("v_and_b32 %s, 16, %s" % (v(t), v(lane)))
    A("v_lshl_add_u32 %s, %s, 1, %s" % (v(dst), v(t), v(dst)))
    A("v_and_b32 %s, 3, %s" % (v(t), v(lane)))
    A("v_lshl_add_u32 %s, %s, 3, %s" % (v(dst), v(t), v(dst)))

def w_chunk(A, dst, lane, t):
    A("v_lshrrev_b32 %s, 3, %s" % (v(t), v(lane)))
    A("v_and_b32 %s, 2, %s" % (v(t), v(t)))
    A("v_and_b32 %s, 3, %s" % (v(dst), v(lane)))
    A("v_xor_b32 %s, %s, %s" % (v(dst), v(dst), v(t)))
    A("v_lshlrev_b32 %s, 4, %s" % (v(dst), v(dst)))

G1_STRIDE = 30720
def g1_tail(A):
    A("s_load_dwordx2 s[46:47], s[0:1], 16")
    A("s_load_dwordx2 s[48:49], s[0:1], 48")
    srd(A, 16, 6, 16384, 48 * MB_)
    A("s_lshl_b32 s38, s2, 3")
    A("s_add_u32 s38, s38, s28")
    A("s_lshl_b32 s39, s38, 3")
    A("v_mov_b32 v2, 0")
    A("v_mov_b32 v3, 0")
    A("s_mov_b64 exec, 1")
    A("buffer_store_dwordx2 v[2:3], v2, s[16:19], s39 offen")
    A("s_mov_b64 exec, -1")
    A("v_lshlrev_b32 v3, 6, v1")
    A("s_lshl_b32 s39, s38, 12")
    A("s_waitcnt lgkmcnt(0)")
    if "nopf" in OPT: return
    srd(A, 16, 48, 3584 * 2048)
    A("buffer_load_dword v4, v3, s[16:19], s39 offen")
    srd(A, 16, 46, 1024 * 2048)
    A("buffer_load_dword v5, v3, s[16:19], s39 offen")

def gen_gemm1(A):
    name = "gemm1_kernel"
    kernel_begin(A, name)
    R, S = 4, 32
    A("s_cmp_ge_u32 s2, 256")
    A("s_cbranch_scc1 L_g1_done")
    stamp(A, 0)
    A("s_load_dwordx2 s[4:5], s[0:1], 8")
    A("s_load_dwordx4 s[24:27], s[0:1], 32")
    A("s_load_dwordx2 s[6:7], s[0:1], 80")
    A("v_and_b32 v1, 63, v0")
    A("v_lshrrev_b32 v2, 6, v0")
    A("s_nop 0")
    A("v_readfirstlane_b32 s28, v2")
    A("s_and_b32 s29, s2, 1")
    A("s_lshl_b32 s29, s29, 2")
    A("s_bfe_u32 s30, s2, 0x20003")
    A("s_add_u32 s29, s29, s30")
    A("s_bfe_u32 s30, s2, 0x10001")
    A("s_lshl_b32 s30, s30, 3")
    A("s_lshr_b32 s31, s2, 5")
    A("s_add_u32 s30, s30, s31")
    A("s_and_b32 s32, s28, 3")
    A("s_lshr_b32 s33, s28, 2")
    A("v_lshlrev_b32 v3, 4, v1")
    A("v_lshl_add_u32 v3, v2, 11, v3")
    if "xdirect" in OPT:
        A("v_and_b32 v3, 15, v1")
        A("v_lshlrev_b32 v3, 11, v3")
        A("v_lshrrev_b32 v7, 4, v1")
        A("v_lshl_add_u32 v3, v7, 4, v3")
        A("v_lshl_add_u32 v3, v2, 16, v3")
        A("v_add_u32 v216, %d, v3" % (16 * 2048 - 1024))
    A("s_lshl_b32 s34, s32, 12")
    A("v_lshlrev_b32 v8, 4, v1")
    A("v_add_u32 v8, s34, v8")
    A("v_add_u32 v9, %d, v8" % (2 * G1_STRIDE))
    tr_base(A, 6, 1, 7)
    w_chunk(A, 4, 1, 7)
    A("v_lshrrev_b32 v5, 4, v1")
    A("v_lshlrev_b32 v5, 3, v5")
    A("v_bfe_u32 v7, v1, 2, 2")
    A("v_add_u32 v5, v5, v7")
    A("s_lshl_b32 s35, s28, 11")
    A("s_lshl_b32 s36, s29, %d" % (19 if "xdirect" in OPT else 14))
    A("s_mov_b32 s37, 0")
    A("s_waitcnt lgkmcnt(0)")
    A("s_bitcmp1_b32 s2, 2")
    A("s_cbranch_scc1 L_g1_w1")
    ACC, FR0 = 16, 128
    for typ in ("qkv", "w1"):
        NB = 6 if typ == "qkv" else 7
        NHP = NB
        rowb = 6144 if typ == "qkv" else 7168
        if typ == "w1":
            A.label("L_g1_w1")
        srd(A, 8, 6, 4 * MB_, WS_XN if typ == "qkv" else WS_Y)
        if typ == "qkv":
            srd(A, 12, 4, 1024 * 6144)
            A("s_cmp_ge_u32 s28, 3")
            A("s_cselect_b32 s38, 1, 0")
            A("s_mul_i32 s39, s38, 3")
            A("s_sub_u32 s39, s28, s39")
            A("s_lshl_b32 s39, s39, 11")
            A("s_lshl_b32 s40, s30, 1")
            A("s_add_u32 s40, s40, s38")
            A("s_lshl_b32 s40, s40, 6")
            A("s_add_u32 s39, s39, s40")
        else:
            srd(A, 12, 24, 1024 * 7168)
            A("s_mul_i32 s39, s30, 448")
            A("s_lshl_b32 s40, s28, 6")
            A("s_add_u32 s39, s39, s40")
        A("s_movk_i32 s40, %d" % rowb)
        A("v_mul_lo_u32 v5, v5, s40")
        A("v_add3_u32 v4, v4, v5, s39")
        A("v_add_u32 v5, %d, v4" % (4 * rowb - 1024))
        A("s_mul_i32 s40, s33, %d" % ((3 if typ == "qkv" else 4) * 2048))
        A("s_add_u32 s40, s40, 16384")
        A("v_add_u32 v10, s40, v6")
        A("v_xor_b32 v12, 32, v10")
        A("v_add_u32 v11, %d, v10" % (2 * G1_STRIDE))
        A("v_add_u32 v13, %d, v12" % (2 * G1_STRIDE))
        if typ == "w1":
            A("s_lshl_b32 s40, s33, 5")
            A("v_xor_b32 v14, s40, v6")
            A("v_add_u32 v14, %d, v14" % (16384 + 3 * 2048))
            A("v_add_u32 v15, %d, v14" % (2 * G1_STRIDE))
            srd(A, 16, 26, 3584 * 2)
            A("v_lshrrev_b32 v7, 4, v1")
            A("v_lshlrev_b32 v7, 3, v7")
            A("s_mul_i32 s41, s30, 448")
            A("s_lshl_b32 s42, s33, 8")
            A("s_add_u32 s42, s42, s41")
            A("s_lshl_b32 s43, s33, 5")
            A("s_add_u32 s43, s43, s41")
            for t in range(6):
                A("buffer_load_dwordx2 %s, v7, s[16:19], s42 offen offset:%d" % (v(FR0 + 2 * t, 2), t * 32))
            A("buffer_load_dwordx2 %s, v7, s[16:19], s43 offen offset:192" % v(FR0 + 12, 2))
        def read_fn(slot, u, st, NB=NB):
            base = (slot & 1) * G1_STRIDE
            hi = slot >> 1
            xs = [["ds_read_b128 %s, %s offset:%d" % (v(g.xf(st, mb), 4), v(8 + hi), base + mb * 1024)] for mb in range(4)]
            ws = []
            for t in range(NB):
                if t < 6:
                    b, off = (10 if t % 2 == 0 else 12) + hi, (t >> 1) * 2048
                else:
                    b, off = 14 + hi, 0
                for j in range(2):
                    ws.append(["ds_read_b64_tr_b16 %s, %s offset:%d" % (v(g.wf(st, t) + 2 * j, 2), v(b), base + off + j * 1024)])
            return xs[:1] + ws + xs[1:]
        for role in (0, 1):
            def dma_fn(slot, role=role, rowb=rowb):
                out = [["s_add_u32 m0, s35, %d" % (slot * G1_STRIDE), "s_nop 0",
                        "buffer_load_dwordx4 v3, s[8:11], s36 offen lds"],
                       ["buffer_load_dwordx4 %s, s[8:11], s36 offen offset:1024 lds" % ("v216" if "xdirect" in OPT else "v3"),
                        "s_add_u32 s36, s36, %d" % (64 if "xdirect" in OPT else 0x20000)]]
                if role == 0:
                    out += [["s_add_u32 m0, s35, %d" % (slot * G1_STRIDE + 16384), "s_nop 0",
                             "buffer_load_dwordx4 v4, s[12:15], s37 offen lds"],
                            ["buffer_load_dwordx4 v5, s[12:15], s37 offen offset:1024 lds",
                             "s_add_u32 s37, s37, %d" % (32 * rowb)]]
                return out
            L = 4 if role == 0 else 2
            g = Gemm(A, "g1%s%d" % (typ, role), 4, NB, 1, R, S, ACC, FR0, read_fn, dma_fn, L,
                     swap_fn=(lambda nb: nb >= 4) if typ == "qkv" else None, cnt=44)
            if role == 0:
                A("s_cmp_ge_u32 s28, %d" % NHP)
                A("s_cbranch_scc1 L_g1_%s_role1" % typ)
            else:
                A.label("L_g1_%s_role1" % typ)
            for sl in range(R):
                for f in dma_fn(sl):
                    for i in f: A(i)
            if typ == "qkv":
                for i in range(4 * NB * 4):
                    A("v_mov_b32 %s, 0" % v(ACC + i))
            else:
                A("s_waitcnt vmcnt(%d)" % (R * L))
                for t in range(7):
                    c = g.accr(0, t)
                    A("v_lshlrev_b32 %s, 16, %s" % (v(c), v(FR0 + 2 * t)))
                    A("v_and_b32 %s, 0xffff0000, %s" % (v(c + 1), v(FR0 + 2 * t)))
                    A("v_lshlrev_b32 %s, 16, %s" % (v(c + 2), v(FR0 + 2 * t + 1)))
                    A("v_and_b32 %s, 0xffff0000, %s" % (v(c + 3), v(FR0 + 2 * t + 1)))
                    for mb in range(1, 4):
                        for i in range(4):
                            A("v_mov_b32 %s, %s" % (v(g.accr(mb, t) + i), v(c + i)))
            g.run()
            if role == 0:
                A("s_branch L_g1_%s_epi" % typ)
        A.label("L_g1_%s_epi" % typ)
        stamp(A, 2)
        g1_tail(A)
        A("s_nop 7")
        A("v_lshlrev_b32 v3, 4, v1")
        T = FR0
        if typ == "qkv":
            srd(A, 16, 6, 12 * MB_, WS_Q)
            A("s_lshl_b32 s38, s30, 1")
            A("s_add_u32 s38, s38, s33")
            A("s_lshl_b32 s38, s38, 17")
            A("s_lshl_b32 s39, s29, 14")
            A("s_lshl_b32 s40, s32, 12")
            A("s_add_u32 s38, s38, s39")
            A("s_add_u32 s38, s38, s40")
            A("s_add_u32 s39, s38, 0x%x" % (4 * MB_))
            A("s_add_u32 s40, s38, 0x%x" % (8 * MB_))
            k = 0
            for part, so in ((0, 38), (1, 39)):
                for mb in range(4):
                    d = T + 4 * (k % 8); k += 1
                    for h in range(2):
                        c = g.accr(mb, 2 * part + h)
                        A("v_cvt_pk_bf16_f32 %s, %s, %s" % (v(d + 2 * h), v(c), v(c + 1)))
                        A("v_cvt_pk_bf16_f32 %s, %s, %s" % (v(d + 2 * h + 1), v(c + 2), v(c + 3)))
                    A("buffer_store_dwordx4 %s, v3, s[16:19], %s offen offset:%d" % (v(d, 4), s(so), mb * 1024))
            for tb in range(2):
                for db in range(2):
                    d = T + 32 + 4 * (tb * 2 + db)
                    for h in range(2):
                        c = g.accr(2 * tb + h, 4 + db)
                        A("v_cvt_pk_bf16_f32 %s, %s, %s" % (v(d + 2 * h), v(c), v(c + 1)))
                        A("v_cvt_pk_bf16_f32 %s, %s, %s" % (v(d + 2 * h + 1), v(c + 2), v(c + 3)))
                    A("buffer_store_dwordx4 %s, v3, s[16:19], s40 offen offset:%d" % (v(d, 4), (tb * 2 + db) * 1024))
            stamp_out(A, 1, 5, 6, "s28")
            A("s_endpgm")
        else:
            srd(A, 16, 6, ACT_BYTES, WS_ACT)
            c0 = -2.0 * math.sqrt(2.0 / math.pi) * math.log2(math.e)
            A("v_mov_b32 v2, %s" % f32(c0))
            A("s_mov_b32 s45, %s" % f32(c0 * 0.044715))
            A("s_mul_i32 s38, s30, 7")
            A("s_lshl_b32 s38, s38, 17")
            A("s_lshl_b32 s39, s29, 14")
            A("s_lshl_b32 s40, s32, 12")
            A("s_add_u32 s38, s38, s39")
            A("s_add_u32 s38, s38, s40")
            A("s_lshl_b32 s39, s33, 3")
            A("s_add_u32 s39, s39, s38")
            A("s_add_u32 s39, s39, 0x%x" % (3 << 17))
            A("s_lshl_b32 s40, s33, 19")
            A("s_add_u32 s38, s38, s40")
            k = 0
            for pr in range(3):
                for mb in range(4):
                    d = T + 8 + 4 * (k % 8); k += 1
                    for h in range(2):
                        c = g.accr(mb, 2 * pr + h)
                        gelu4(A, c, T + 4 * h, 2, 45)
                        A("v_cvt_pk_bf16_f32 %s, %s, %s" % (v(d + 2 * h), v(c), v(c + 1)))
                        A("v_cvt_pk_bf16_f32 %s, %s, %s" % (v(d + 2 * h + 1), v(c + 2), v(c + 3)))
                    A("buffer_store_dwordx4 %s, v3, s[16:19], s38 offen offset:%d" % (v(d, 4), mb * 1024))
                if pr < 2:
                    A("s_add_u32 s38, s38, 0x20000")
            for mb in range(4):
                d = T + 8 + 4 * (k % 8); k += 1
                c = g.accr(mb, 6)
                gelu4(A, c, T + 4 * (mb & 1), 2, 45)
                A("v_cvt_pk_bf16_f32 %s, %s, %s" % (v(d), v(c), v(c + 1)))
                A("v_cvt_pk_bf16_f32 %s, %s, %s" % (v(d + 1), v(c + 2), v(c + 3)))
                A("buffer_store_dwordx2 %s, v3, s[16:19], s39 offen offset:%d" % (v(d, 2), mb * 1024))
    stamp_out(A, 1, 5, 6, "s28")
    A.label("L_g1_done")
    A("s_endpgm")
    kernel_desc(A, name, 224, 96)
    return "; @launch kernel=%s grid=(256,1,1) block=(512,1,1) lds=%d" % (name, R * G1_STRIDE)

def gen_attn(A):
    name = "attn_kernel"
    kernel_begin(A, name)
    A("s_cmp_ge_u32 s2, 512")
    A("s_cbranch_scc1 L_at_done")
    stamp(A, 0)
    A("s_load_dwordx2 s[6:7], s[0:1], 80")
    A("v_and_b32 v1, 63, v0")
    A("v_lshrrev_b32 v2, 6, v0")
    A("s_nop 0")
    A("v_readfirstlane_b32 s28, v2")
    A("s_and_b32 s29, s2, 7")
    A("s_lshl_b32 s29, s29, 2")
    A("s_bfe_u32 s30, s2, 0x20003")
    A("s_add_u32 s29, s29, s30")
    A("s_lshr_b32 s30, s2, 5")
    A("s_lshl_b32 s30, s30, 2")
    A("s_add_u32 s30, s30, s28")
    A("v_lshlrev_b32 v3, 4, v1")
    A("s_lshl_b32 s31, s29, 17")
    A("s_lshl_b32 s32, s30, 11")
    A("s_waitcnt lgkmcnt(0)")
    srd(A, 8, 6, 12 * MB_, WS_Q)
    srd(A, 12, 6, ACT_BYTES, WS_ACT)
    Q, K, V, S_, O = 8, 32, 104, 176, 16
    A("s_add_u32 s33, s31, s32")
    A("buffer_load_dwordx4 %s, v3, s[8:11], s33 offen" % v(Q, 4))
    A("buffer_load_dwordx4 %s, v3, s[8:11], s33 offen offset:1024" % v(Q + 4, 4))
    for reg, woff in ((K, 4 * MB_), (V, 8 * MB_)):
        for i in range(9):
            A("s_add_i32 s34, s32, %d" % ((i - 8) * 2048))
            A("s_max_i32 s34, s34, 0")
            A("s_add_u32 s34, s34, s31")
            A("s_add_u32 s34, s34, 0x%x" % woff)
            A("buffer_load_dwordx4 %s, v3, s[8:11], s34 offen" % v(reg + 8 * i, 4))
            A("buffer_load_dwordx4 %s, v3, s[8:11], s34 offen offset:1024" % v(reg + 8 * i + 4, 4))
    A("v_and_b32 v4, 15, v1")
    A("v_lshrrev_b32 v5, 4, v1")
    A("v_lshlrev_b32 v5, 2, v5")
    for r in range(4):
        A("v_add_u32 v6, %d, v5" % r)
        A("v_cmp_lt_u32 %s, v4, v6" % s(40 + 2 * r, 2))
    A("v_mov_b32 v7, 0xff800000")
    for i in range(4):
        A("v_mov_b32 %s, 0x3f803f80" % v(28 + i))
    c = (32 ** -0.5) * math.log2(math.e)
    A("s_mov_b32 s36, %s" % f32(c))
    A("s_lshl_b32 s37, s30, 1")
    A("s_sub_i32 s37, 16, s37")
    A("s_add_u32 s38, s33, 0x%x" % (112 << 17))
    for qb in range(2):
        tiles = list(range(qb, qb + 17))
        dead = 17 if qb == 0 else 0
        for n, kt in enumerate(tiles):
            if qb == 0:
                A("s_waitcnt vmcnt(%d)" % (18 + 17 - kt))
            elif kt == 17:
                pass
            A("v_mfma_f32_16x16x32_bf16 %s, %s, %s, 0" % (v(S_ + 4 * kt, 4), v(K + 4 * kt, 4), v(Q + 4 * qb, 4)))
        for i in range(4):
            A("v_mov_b32 %s, v7" % v(S_ + 4 * dead + i))
        A("s_nop 7")
        for r in range(4):
            A("v_cndmask_b32 %s, v7, %s, %s" % (v(S_ + 4 * tiles[0] + r), v(S_ + 4 * tiles[0] + r), s(40 + 2 * r, 2)))
            A("v_cndmask_b32 %s, %s, v7, %s" % (v(S_ + 4 * tiles[-1] + r), v(S_ + 4 * tiles[-1] + r), s(40 + 2 * r, 2)))
        lab = A.newlabel("at_noinv")
        for kt in range(0, 16, 2):
            A("s_cmp_le_i32 s37, %d" % kt)
            A("s_cbranch_scc1 %s" % lab)
            for i in range(8):
                A("v_mov_b32 %s, v7" % v(S_ + 4 * kt + i))
        A.label(lab)
        regs = [S_ + 4 * kt + i for kt in tiles for i in range(4)]
        A("v_max3_f32 v4, %s, %s, %s" % (v(regs[0]), v(regs[1]), v(regs[2])))
        A("v_max3_f32 v5, %s, %s, %s" % (v(regs[3]), v(regs[4]), v(regs[5])))
        rest = regs[6:]
        for i in range(0, len(rest), 2):
            d = 4 + (i // 2) % 2
            A("v_max3_f32 %s, %s, %s, %s" % (v(d), v(d), v(rest[i]), v(rest[i + 1])))
        A("v_max_f32 v4, v4, v5")
        xlane_sum(A, 4, 5, op="v_max_f32", ror8=False)
        A("v_mul_f32 v4, s36, v4")
        if qb == 0:
            A("s_waitcnt vmcnt(0)")
        for kb in range(9):
            b = S_ + 8 * kb
            for i in range(8):
                A("v_fma_f32 %s, %s, s36, -v4" % (v(b + i), v(b + i)))
            for i in range(8):
                A("v_exp_f32 %s, %s" % (v(b + i), v(b + i)))
            A("s_nop 0")
            for i in range(4):
                A("v_cvt_pk_bf16_f32 %s, %s, %s" % (v(b + i), v(b + 2 * i), v(b + 2 * i + 1)))
            A("s_nop 1")
            for d in range(3):
                aop = v(V + 8 * kb + 4 * d, 4) if d < 2 else v(28, 4)
                cin = v(O + 4 * d, 4) if kb else "0"
                A("v_mfma_f32_16x16x32_bf16 %s, %s, %s, %s" % (v(O + 4 * d, 4), aop, v(b, 4), cin))
        A("s_nop 7")
        A("v_rcp_f32 v4, %s" % v(O + 8))
        A("s_nop 0")
        for i in range(8):
            A("v_mul_f32 %s, %s, v4" % (v(O + i), v(O + i)))
        for i in range(4):
            A("v_cvt_pk_bf16_f32 %s, %s, %s" % (v(248 + 4 * qb + i), v(O + 2 * i), v(O + 2 * i + 1)))
        A("buffer_store_dwordx4 %s, v3, s[12:15], s38 offen offset:%d" % (v(248 + 4 * qb, 4), qb * 1024))
    stamp_out(A, 2, 3, 6, "s28")
    A.label("L_at_done")
    A("s_endpgm")
    kernel_desc(A, name, 256, 96)
    return "; @launch kernel=%s grid=(512,1,1) block=(256,1,1) lds=0" % name

WS_PART, WS_FLAG = 40 * MB_, 48 * MB_
G2_SP = int(os.environ.get("G2SP", "32"))
def gen_gemm2(A):
    name = "gemm2_kernel"
    kernel_begin(A, name)
    R, KS, ST = 4, 2, 32768
    SP, SQ = G2_SP, 72 - G2_SP
    A("s_cmp_ge_u32 s2, 256")
    A("s_cbranch_scc1 L_g2_done")
    stamp(A, 0)
    A("s_load_dwordx2 s[4:5], s[0:1], 0")
    A("s_load_dwordx2 s[20:21], s[0:1], 16")
    A("s_load_dwordx4 s[24:27], s[0:1], 48")
    A("s_load_dwordx2 s[22:23], s[0:1], 64")
    A("s_load_dwordx2 s[6:7], s[0:1], 80")
    A("v_and_b32 v1, 63, v0")
    A("v_lshrrev_b32 v2, 6, v0")
    A("v_lshlrev_b32 v3, 4, v1")
    A("v_readfirstlane_b32 s28, v2")
    A("s_and_b32 s29, s2, 1")
    A("s_lshl_b32 s29, s29, 3")
    A("s_bfe_u32 s30, s2, 0x30003")
    A("s_add_u32 s29, s29, s30")
    A("s_bfe_u32 s30, s2, 0x10001")
    A("s_lshl_b32 s30, s30, 2")
    A("s_lshr_b32 s31, s2, 6")
    A("s_add_u32 s30, s30, s31")
    A("s_bfe_u32 s31, s2, 0x10002")
    A("s_cmp_eq_u32 s31, 0")
    A("s_cselect_b32 s44, %d, %d" % (SP // R - 1, SQ // R - 1))
    A("s_cmp_ge_u32 s28, 4")
    A("s_cbranch_scc1 L_g2_loader")
    A("s_and_b32 s32, s28, 1")
    A("s_lshr_b32 s33, s28, 1")
    A("s_lshl_b32 s34, s32, 12")
    A("v_add_u32 v8, s34, v3")
    A("v_add_u32 v9, 0x10000, v8")
    A("v_lshrrev_b32 v6, 5, v1")
    A("v_lshlrev_b32 v6, 11, v6")
    A("v_bfe_u32 v7, v1, 2, 3")
    A("v_lshl_add_u32 v6, v7, 7, v6")
    A("v_bfe_u32 v7, v1, 3, 2")
    A("v_lshl_add_u32 v6, v7, 5, v6")
    A("v_and_b32 v7, 3, v1")
    A("v_lshl_add_u32 v6, v7, 3, v6")
    A("s_lshl_b32 s34, s33, 10")
    A("s_add_u32 s34, s34, 16384")
    A("v_add_u32 v10, s34, v6")
    for t in range(1, 4):
        A("v_xor_b32 %s, %d, v10" % (v(10 + t), 32 * t))
    for t in range(4):
        A("v_add_u32 %s, 0x10000, %s" % (v(14 + t), v(10 + t)))
    ACC, FR0, PT = 24, 88, 152
    A("v_and_b32 v19, 15, v1")
    A("v_lshlrev_b32 v19, 11, v19")
    A("v_lshrrev_b32 v7, 4, v1")
    A("v_lshlrev_b32 v7, 3, v7")
    A("v_add_u32 v20, v19, v7")
    A("s_lshl_b32 s38, s30, 8")
    A("s_lshl_b32 s39, s33, 7")
    A("s_add_u32 s38, s38, s39")
    A("s_lshl_b32 s39, s29, 18")
    A("s_lshl_b32 s47, s32, 17")
    A("s_add_u32 s39, s39, s47")
    A("s_add_u32 s39, s39, s38")
    A("s_lshl_b32 s48, s29, 3")
    A("s_add_u32 s48, s48, s30")
    A("s_lshl_b32 s48, s48, 2")
    A("s_add_u32 s48, s48, s28")
    A("s_lshl_b32 s49, s48, 5")
    A("s_add_u32 s49, s49, 0x%x" % (WS_FLAG - WS_PART))
    A("s_lshl_b32 s48, s48, 14")
    A("v_mov_b32 v21, 0")
    A("s_waitcnt lgkmcnt(0)")
    srd(A, 8, 6, WS_FLAG - WS_PART + 16384, WS_PART)
    def read_fn(slot, u, st):
        hi, base = slot >> 1, (slot & 1) * ST
        xs = [["ds_read_b128 %s, %s offset:%d" % (v(g.xf(st, mb), 4), v(8 + hi), base + u * 8192 + mb * 1024)] for mb in range(4)]
        ws = []
        for t in range(4):
            for j in range(2):
                ws.append(["ds_read_b64_tr_b16 %s, %s offset:%d" % (v(g.wf(st, t) + 2 * j, 2), v(10 + 4 * hi + t), base + u * 8192 + j * 4096)])
        return xs[:1] + ws + xs[1:]
    g = Gemm(A, "g2", 4, 4, KS, R, 3 * R, ACC, FR0, read_fn, lambda sl: [], 0, cnt=44, rd_last=11)
    for i in range(64):
        A("v_mov_b32 %s, 0" % v(ACC + i))
    A("v_lshrrev_b32 v23, 4, v1")
    A("v_and_b32 v6, 1, v23")
    A("v_lshlrev_b32 v6, 5, v6")
    A("v_lshrrev_b32 v23, 1, v23")
    A("v_lshl_add_u32 v6, v23, 4, v6")
    A("v_add_u32 v6, v6, v19")
    g.period(-1, R - 1, True, False, None, first=True)
    stamp(A, 1)
    def xloads():
        if "xact" in OPT:
            srd(A, 16, 6, 4 * MB_, WS_ACT)
            srd(A, 40, 6, 2048, WS_ACT)
        else:
            srd(A, 16, 4, 4 * MB_)
            srd(A, 40, 26, 2048)
        for t in range(4):
            A("buffer_load_dwordx2 %s, v7, s[40:43], s38 offen offset:%d" % (v(PT + 32 + 2 * t, 2), t * 32))
        for mb in range(4):
            A("s_add_u32 s47, s39, %d" % (mb * 32768))
            for h in range(2):
                A("buffer_load_dwordx4 %s, v6, s[16:19], s47 offen offset:%d" % (v(PT + 8 * mb + 4 * h, 4), h * 64))
    if "xearly" in OPT:
        A("s_cmp_lg_u32 s31, 0")
        A("s_cbranch_scc1 L_g2_loop")
        xloads()
    A.label("L_g2_loop")
    for p in range(R):
        g.period(p, p, True, False, None)
    A("s_sub_u32 s44, s44, 1")
    A("s_cmp_lg_u32 s44, 0")
    A("s_cbranch_scc1 L_g2_loop")
    A("s_cmp_lg_u32 s31, 0")
    A("s_cbranch_scc1 L_g2_poll")
    if "xearly" not in OPT: xloads()
    A("s_branch L_g2_nopoll")
    A.label("L_g2_poll")
    A("buffer_load_dword v22, v21, s[8:11], s49 offen sc1")
    A("s_waitcnt vmcnt(0)")
    A("v_readfirstlane_b32 s50, v22")
    A("s_cmp_eq_u32 s50, 0")
    A("s_cbranch_scc1 L_g2_poll")
    for q in range(4):
        A("s_add_u32 s47, s48, %d" % (q * 4096))
        for i in range(4):
            A("buffer_load_dwordx4 %s, v3, s[8:11], s47 offen offset:%d sc1" % (v(PT + 16 * q + 4 * i, 4), i * 1024))
    A.label("L_g2_nopoll")
    for p in range(R - 1):
        g.period(p, p, True, False, None)
    A("s_waitcnt lgkmcnt(0)")
    g.period(R - 1, R - 1, False, False, None, barrier=False)
    stamp(A, 2)
    A("s_nop 7")
    A("s_cmp_lg_u32 s31, 0")
    A("s_cbranch_scc1 L_g2_fin")
    A("s_waitcnt vmcnt(0)")
    for t in range(4):
        b, bb = PT + 32 + 2 * t, PT + 40 + 4 * t
        A("v_lshlrev_b32 %s, 16, %s" % (v(bb), v(b)))
        A("v_and_b32 %s, 0xffff0000, %s" % (v(bb + 1), v(b)))
        A("v_lshlrev_b32 %s, 16, %s" % (v(bb + 2), v(b + 1)))
        A("v_and_b32 %s, 0xffff0000, %s" % (v(bb + 3), v(b + 1)))
    for d in range(PT, PT + 32, 4):
        A("v_permlane16_swap_b32 %s, %s" % (v(d), v(d + 2)))
        A("v_permlane16_swap_b32 %s, %s" % (v(d + 1), v(d + 3)))
    for mb in range(4):
        for t in range(4):
            c, x, bb, q = g.accr(mb, t), PT + 8 * mb + 2 * t, PT + 40 + 4 * t, PT + 56 + 4 * (t & 1)
            A("v_lshlrev_b32 %s, 16, %s" % (v(q), v(x)))
            A("v_and_b32 %s, 0xffff0000, %s" % (v(q + 1), v(x)))
            A("v_lshlrev_b32 %s, 16, %s" % (v(q + 2), v(x + 1)))
            A("v_and_b32 %s, 0xffff0000, %s" % (v(q + 3), v(x + 1)))
            for i in range(0, 4, 2):
                A("v_pk_add_f32 %s, %s, %s" % (v(q + i, 2), v(q + i, 2), v(bb + i, 2)))
            for i in range(0, 4, 2):
                A("v_pk_add_f32 %s, %s, %s" % (v(c + i, 2), v(c + i, 2), v(q + i, 2)))
    for q in range(4):
        A("s_add_u32 s47, s48, %d" % (q * 4096))
        for i in range(4):
            A("buffer_store_dwordx4 %s, v3, s[8:11], s47 offen offset:%d sc1" % (v(ACC + 16 * q + 4 * i, 4), i * 1024))
    A("v_mov_b32 v22, 1")
    A("s_waitcnt vmcnt(0)")
    A("s_mov_b64 exec, 1")
    A("buffer_store_dword v22, v21, s[8:11], s49 offen sc1")
    A("s_mov_b64 exec, -1")
    stamp_out(A, 1, 5, 6, "s28")
    A("s_endpgm")
    A.label("L_g2_fin")
    srd(A, 16, 22, 4 * MB_)
    for mb in range(4):
        A("s_waitcnt vmcnt(%d)" % (12 - 4 * mb + 2 * mb))
        for i in range(16):
            A("v_add_f32 %s, %s, %s" % (v(ACC + 16 * mb + i), v(ACC + 16 * mb + i), v(PT + 16 * mb + i)))
        A("s_add_u32 s47, s39, %d" % (mb * 32768))
        for h in range(2):
            d = FR0 + 8 * mb + 4 * h
            for t in range(2):
                c = g.accr(mb, 2 * h + t)
                A("v_cvt_pk_bf16_f32 %s, %s, %s" % (v(d + 2 * t), v(c), v(c + 1)))
                A("v_cvt_pk_bf16_f32 %s, %s, %s" % (v(d + 2 * t + 1), v(c + 2), v(c + 3)))
            A("s_nop 1")
            A("v_permlane16_swap_b32 %s, %s" % (v(d), v(d + 2)))
            A("v_permlane16_swap_b32 %s, %s" % (v(d + 1), v(d + 3)))
            A("buffer_store_dwordx4 %s, v6, s[16:19], s47 offen offset:%d%s" % (v(d, 4), h * 64, OUTSC))
    stamp_out(A, 1, 5, 6, "s28")
    A("s_endpgm")
    A.label("L_g2_loader")
    A("s_sub_u32 s28, s28, 4")
    A("s_lshr_b32 s32, s28, 1")
    A("s_and_b32 s33, s28, 1")
    A("s_mul_i32 s36, s31, %d" % (SP * 2 * 131072))
    A("s_lshl_b32 s34, s32, 17")
    A("s_add_u32 s36, s36, s34")
    A("s_lshl_b32 s34, s29, 13")
    A("s_add_u32 s36, s36, s34")
    A("s_lshl_b32 s34, s33, 12")
    A("s_add_u32 s36, s36, s34")
    A("s_mul_i32 s37, s31, %d" % (SP * 64 * 2048))
    A("s_lshl_b32 s35, s28, 12")
    A("v_lshrrev_b32 v5, 3, v1")
    A("v_lshlrev_b32 v5, 11, v5")
    A("v_bfe_u32 v6, v1, 4, 2")
    A("v_lshlrev_b32 v6, 1, v6")
    A("v_and_b32 v7, 7, v1")
    A("v_xor_b32 v6, v6, v7")
    A("v_lshl_add_u32 v5, v6, 4, v5")
    A("s_lshl_b32 s34, s28, 15")
    A("s_lshl_b32 s38, s30, 8")
    A("s_add_u32 s34, s34, s38")
    A("v_add_u32 v4, s34, v5")
    A("v_add_u32 v5, %d, v4" % 128)
    A("v_add_u32 v6, %d, v4" % (16384 - 2048))
    A("v_add_u32 v7, %d, v4" % (16384 + 128 - 2048))
    A("s_waitcnt lgkmcnt(0)")
    srd(A, 8, 6, ACT_BYTES, WS_ACT)
    srd(A, 12, 24, 3584 * 2048)
    def dma(slot):
        for ch in range(2):
            A("s_add_u32 m0, s35, %d" % (slot * ST + 16384 + ch * 1024))
            A("s_nop 0")
            for i in range(2):
                A("buffer_load_dwordx4 %s, s[12:15], s37 offen offset:%d lds" % (v(4 + ch + 2 * i), i * 2048))
        A("s_add_u32 m0, s35, %d" % (slot * ST))
        A("s_add_u32 s37, s37, 0x20000")
        for i in range(4):
            A("buffer_load_dwordx4 v3, s[8:11], s36 offen offset:%d lds" % (i * 1024))
        A("s_add_u32 s36, s36, 0x40000")
        A("s_cmp_eq_u32 s37, 0x%x" % (3584 * 2048))
        A("s_cselect_b32 s12, s20, s12")
        A("s_cselect_b32 s13, s21, s13")
        A("s_cselect_b32 s14, 0x200000, s14")
        A("s_cselect_b32 s37, 0, s37")
    for sl in range(R):
        dma(sl)
    A("s_waitcnt vmcnt(%d)" % (8 * (R - 1)))
    A("s_barrier")
    A.label("L_g2_lloop")
    for p in range(R):
        A("s_waitcnt vmcnt(%d)" % (8 * (R - 2)))
        A("s_barrier")
        dma(p)
    A("s_sub_u32 s44, s44, 1")
    A("s_cmp_lg_u32 s44, 0")
    A("s_cbranch_scc1 L_g2_lloop")
    for p in range(R - 1):
        A("s_waitcnt vmcnt(%d)" % (8 * (R - 2 - p)))
        A("s_barrier")
    A.label("L_g2_done")
    A("s_endpgm")
    kernel_desc(A, name, 216, 96)
    return "; @launch kernel=%s grid=(256,1,1) block=(512,1,1) lds=%d" % (name, R * ST)

def main(out):
    A = Asm()
    if "nosc1" not in OPT:
        base = A.__class__.__call__
        class B(Asm):
            def __call__(self, t):
                if t.startswith("buffer_store") and "s[64:67]" not in t and "sc1" not in t: t += " sc1"
                Asm.__call__(self, t)
        A = B()
    A.raw('.amdgcn_target "amdgcn-amd-amdhsa--gfx950"')
    ls = [gen_ln(A), gen_gemm1(A), gen_attn(A), gen_gemm2(A)]
    hdr = "; generated by dev/gen.py\n" + "\n".join(ls) + "\n"
    open(out, "w").write(hdr + A.text())

if __name__ == "__main__":
    main(sys.argv[1] if len(sys.argv) > 1 else "cdna_kernels/%s.s" % NAME)
```

```python
from gen import *

WS_KV, WS_SYNC = 8 * MB_, 48 * MB_
K1_WR, K1_WST, K1_SP = 98304, 14336, 155648

def reduce64(A, x, t, op="v_add_f32"):
    for r in (8, 4, 2, 1):
        A("s_nop 1")
        A("%s_dpp %s, %s, %s row_ror:%d row_mask:0xf bank_mask:0xf" % (op, v(x), v(x), v(x), r))
    xlane_sum(A, x, t, op=op, ror8=False)

def k1_stats(A, T):
    X, a_, b_, m_, q_ = T + 8, T + 24, T + 25, T + 26, T + 27
    for i in range(8):
        A("v_lshlrev_b32 %s, 16, %s" % (v(X + 2 * i), v(T + i)))
        A("v_and_b32 %s, 0xffff0000, %s" % (v(X + 2 * i + 1), v(T + i)))
    A("v_add_f32 %s, %s, %s" % (v(a_), v(X), v(X + 1)))
    A("v_add_f32 %s, %s, %s" % (v(b_), v(X + 2), v(X + 3)))
    for i in range(4, 16, 2):
        A("v_add_f32 %s, %s, %s" % (v(a_), v(a_), v(X + i)))
        A("v_add_f32 %s, %s, %s" % (v(b_), v(b_), v(X + i + 1)))
    A("v_add_f32 %s, %s, %s" % (v(a_), v(a_), v(b_)))
    reduce64(A, a_, b_)
    A("v_mul_f32 %s, %s, %s" % (v(m_), f32(1.0 / 1024), v(a_)))
    for i in range(16):
        A("v_sub_f32 %s, %s, %s" % (v(X + i), v(X + i), v(m_)))
    A("v_mul_f32 %s, %s, %s" % (v(a_), v(X), v(X)))
    A("v_mul_f32 %s, %s, %s" % (v(b_), v(X + 1), v(X + 1)))
    for i in range(2, 16, 2):
        A("v_fmac_f32 %s, %s, %s" % (v(a_), v(X + i), v(X + i)))
        A("v_fmac_f32 %s, %s, %s" % (v(b_), v(X + i + 1), v(X + i + 1)))
    A("v_add_f32 %s, %s, %s" % (v(a_), v(a_), v(b_)))
    reduce64(A, a_, b_)
    A("v_mul_f32 %s, %s, %s" % (v(q_), f32(1.0 / 1024), v(a_)))
    def std(dst, var):
        A("v_mov_b32 %s, %s" % (v(dst), v(var)))
        rnd_bf16(A, dst)
        A("v_add_f32 %s, %s, %s" % (v(dst), f32(1e-5), v(dst)))
        rnd_bf16(A, dst)
        A("v_sqrt_f32 %s, %s" % (v(dst), v(dst)))
        A("s_nop 0")
        rnd_bf16(A, dst)
    s1, mb_, s2, m2 = X, X + 1, X + 2, X + 3
    std(s1, q_)
    A("v_rcp_f32 %s, %s" % (v(T), v(s1)))
    A("v_mov_b32 %s, %s" % (v(mb_), v(m_)))
    rnd_bf16(A, mb_)
    A("v_mul_f32 %s, -%s, %s" % (v(T + 1), v(T), v(mb_)))
    A("v_sub_f32 %s, %s, %s" % (v(m2), v(m_), v(mb_)))
    A("v_mul_f32 %s, %s, %s" % (v(m2), v(m2), v(T)))
    rnd_bf16(A, m2)
    A("v_mul_f32 %s, %s, %s" % (v(q_), v(q_), v(T)))
    A("v_mul_f32 %s, %s, %s" % (v(q_), v(q_), v(T)))
    std(s2, q_)
    A("v_rcp_f32 %s, %s" % (v(s2), v(s2)))
    A("v_fma_f32 %s, %s, %s, %s" % (v(m2), v(m2), v(s1), v(mb_)))
    A("v_mul_f32 %s, %s, %s" % (v(T + 2), v(T), v(s2)))
    A("v_mul_f32 %s, -%s, %s" % (v(T + 3), v(T + 2), v(m2)))

def attn_body(A, tag, Qr, O, M, base, sN):
    S_, KF, VF, ONES, NINF = 28, 156, 172, 188, 7
    def Sr(j, qb, kb): return S_ + 16 * j + 8 * qb + 4 * kb
    def rd(F, j, off):
        for k in range(2):
            A("ds_read_b128 %s, %s offset:%d" % (v(F + 8 * (j & 1) + 4 * k, 4), v(base), j * 4096 + off + k * 1024))
    l1, l2, l3 = (A.newlabel(tag + x) for x in "abc")
    rd(KF, 0, 0)
    for j in range(8):
        if j < 7:
            rd(KF, j + 1, 0)
            A("s_waitcnt lgkmcnt(2)")
        else:
            A("s_waitcnt lgkmcnt(0)")
        for qb in range(2):
            for kb in range(2):
                A("v_mfma_f32_16x16x32_bf16 %s, %s, %s, 0" % (v(Sr(j, qb, kb), 4), v(KF + 8 * (j & 1) + 4 * kb, 4), v(Qr + 4 * qb, 4)))
        if j < 7:
            A("s_cmp_eq_u32 %s, %d" % (s(sN), j + 1))
            A("s_cbranch_scc1 %s" % l1)
    A.label(l1)
    rd(VF, 0, 2048)
    A("s_nop 7")
    for r in range(4):
        A("v_cndmask_b32 %s, %s, v7, %s" % (v(Sr(0, 0, 0) + r), v(Sr(0, 0, 0) + r), s(36 + 2 * r, 2)))
        A("v_cndmask_b32 %s, %s, v7, s[44:45]" % (v(Sr(0, 0, 1) + r), v(Sr(0, 0, 1) + r)))
        A("v_cndmask_b32 %s, %s, v7, s[46:47]" % (v(Sr(0, 1, 0) + r), v(Sr(0, 1, 0) + r)))
        A("v_cndmask_b32 %s, %s, v7, %s" % (v(Sr(0, 1, 1) + r), v(Sr(0, 1, 1) + r), s(36 + 2 * r, 2)))
    A("v_mov_b32 v8, %s" % v(M))
    A("v_mov_b32 v9, %s" % v(M + 1))
    for j in range(8):
        for i in range(0, 8, 2):
            for qb in range(2):
                A("v_max3_f32 %s, %s, %s, %s" % (v(8 + qb), v(8 + qb), v(Sr(j, qb, 0) + i), v(Sr(j, qb, 0) + i + 1)))
        if j < 7:
            A("s_cmp_eq_u32 %s, %d" % (s(sN), j + 1))
            A("s_cbranch_scc1 %s" % l2)
    A.label(l2)
    for sw in ("16", "32"):
        A("v_mov_b32 v10, v8")
        A("v_mov_b32 v11, v9")
        A("s_nop 0")
        A("v_permlane%s_swap_b32 v8, v10" % sw)
        A("v_permlane%s_swap_b32 v9, v11" % sw)
        A("v_max_f32 v8, v8, v10")
        A("v_max_f32 v9, v9, v11")
    for qb in range(2):
        A("v_sub_f32 %s, %s, %s" % (v(10 + qb), v(M + qb), v(8 + qb)))
        A("v_mul_f32 %s, s48, %s" % (v(10 + qb), v(10 + qb)))
        A("v_exp_f32 %s, %s" % (v(10 + qb), v(10 + qb)))
        A("v_mov_b32 %s, %s" % (v(M + qb), v(8 + qb)))
        A("v_mul_f32 %s, s48, %s" % (v(8 + qb), v(8 + qb)))
    for qb in range(2):
        for i in range(12):
            A("v_mul_f32 %s, %s, %s" % (v(O + 12 * qb + i), v(O + 12 * qb + i), v(10 + qb)))
    for j in range(8):
        if j < 7:
            rd(VF, j + 1, 2048)
        for qb in range(2):
            b = Sr(j, qb, 0)
            for i in range(8):
                A("v_fma_f32 %s, %s, s48, -%s" % (v(b + i), v(b + i), v(8 + qb)))
            for i in range(8):
                A("v_exp_f32 %s, %s" % (v(b + i), v(b + i)))
        for qb in range(2):
            b = Sr(j, qb, 0)
            for i in range(4):
                A("v_cvt_pk_bf16_f32 %s, %s, %s" % (v(b + i), v(b + 2 * i), v(b + 2 * i + 1)))
        A("s_waitcnt lgkmcnt(%d)" % (2 if j < 7 else 0))
        for qb in range(2):
            for d in range(3):
                aop = v(VF + 8 * (j & 1) + 4 * d, 4) if d < 2 else v(ONES, 4)
                c = v(O + 12 * qb + 4 * d, 4)
                A("v_mfma_f32_16x16x32_bf16 %s, %s, %s, %s" % (c, aop, v(Sr(j, qb, 0), 4), c))
        if j < 7:
            A("s_cmp_eq_u32 %s, %d" % (s(sN), j + 1))
            A("s_cbranch_scc1 %s" % l3)
    A.label(l3)

def gen_k1(A):
    name = "k1_kernel"
    kernel_begin(A, name)
    A("s_cmp_ge_u32 s2, 256")
    A("s_cbranch_scc1 L_k1_done")
    stamp(A, 0)
    A("s_load_dwordx4 s[20:23], s[0:1], 0")
    A("s_load_dwordx4 s[24:27], s[0:1], 32")
    A("s_load_dwordx4 s[4:7], s[0:1], 72")
    A("v_and_b32 v1, 63, v0")
    A("v_lshrrev_b32 v2, 6, v0")
    A("v_lshlrev_b32 v19, 4, v1")
    A("v_readfirstlane_b32 s28, v2")
    A("s_and_b32 s29, s2, 1")
    A("s_lshl_b32 s29, s29, 2")
    A("s_bfe_u32 s30, s2, 0x20003")
    A("s_add_u32 s29, s29, s30")
    A("s_bfe_u32 s30, s2, 0x10001")
    A("s_lshl_b32 s30, s30, 3")
    A("s_lshr_b32 s31, s2, 5")
    A("s_add_u32 s30, s30, s31")
    A("s_and_b32 s32, s28, 3")
    A("s_lshr_b32 s33, s28, 2")
    A("s_lshl_b32 s31, s2, 3")
    A("s_add_u32 s31, s31, s28")
    A("s_lshl_b32 s34, s31, 11")
    A("s_waitcnt lgkmcnt(0)")
    srd(A, 8, 20, 4 * MB_)
    TS = 160
    A("buffer_load_dwordx4 %s, v19, s[8:11], s34 offen" % v(TS, 4))
    A("buffer_load_dwordx4 %s, v19, s[8:11], s34 offen offset:1024" % v(TS + 4, 4))
    A("v_lshrrev_b32 v3, 3, v1")
    A("v_lshlrev_b32 v3, 11, v3")
    A("v_and_b32 v7, 7, v1")
    A("v_lshrrev_b32 v2, 4, v1")
    A("v_xor_b32 v7, v7, v2")
    A("v_lshl_add_u32 v3, v7, 4, v3")
    A("v_xor_b32 v4, 64, v3")
    A("v_add_u32 v4, %d, v4" % (8 * 2048 - 1024))
    A("s_lshl_b32 s36, s29, 19")
    A("s_lshl_b32 s34, s28, 16")
    A("s_add_u32 s36, s36, s34")
    A("s_lshl_b32 s46, s28, 12")
    A("s_mov_b32 s37, 0")
    A("s_lshl_b32 s35, s28, 11")
    A("s_add_u32 s35, s35, %d" % K1_WR)
    w_chunk(A, 5, 1, 7)
    A("v_lshrrev_b32 v6, 4, v1")
    A("v_lshlrev_b32 v6, 3, v6")
    A("v_bfe_u32 v7, v1, 2, 2")
    A("v_add_u32 v6, v6, v7")
    A("s_bitcmp1_b32 s2, 2")
    A("s_cbranch_scc1 L_k1_w1")
    ACC, CS = 28, 20
    for typ in ("qkv", "w1"):
        NB = 6 if typ == "qkv" else 7
        FR0 = ACC + 16 * NB
        EX = FR0 + 8 * (4 + NB)
        rowb = 6144 if typ == "qkv" else 7168
        if typ == "w1":
            A.label("L_k1_w1")
        if typ == "qkv":
            srd(A, 12, 22, 1024 * 6144)
            A("s_cmp_ge_u32 s28, 3")
            A("s_cselect_b32 s38, 1, 0")
            A("s_mul_i32 s39, s38, 3")
            A("s_sub_u32 s39, s28, s39")
            A("s_lshl_b32 s39, s39, 11")
            A("s_lshl_b32 s40, s30, 1")
            A("s_add_u32 s40, s40, s38")
            A("s_lshl_b32 s40, s40, 6")
            A("s_add_u32 s39, s39, s40")
        else:
            srd(A, 12, 24, 1024 * 7168)
            A("s_mul_i32 s39, s30, 448")
            A("s_lshl_b32 s40, s28, 6")
            A("s_add_u32 s39, s39, s40")
        A("s_movk_i32 s40, %d" % rowb)
        A("v_mul_lo_u32 v6, v6, s40")
        A("v_add3_u32 v5, v5, v6, s39")
        A("v_add_u32 v6, %d, v5" % (4 * rowb - 1024))
        g = Gemm(A, "k1", 4, NB, 1, 4, 32, ACC, FR0, None, None, 0, swap_fn=(lambda nb: nb >= 4) if typ == "qkv" else None)
        def reads(stage_par, wslot, st, NB=NB, g=g):
            xs = [["ds_read_b128 %s, %s offset:%d" % (v(g.xf(st, mb), 4), v(8 + 2 * (mb >> 1) + stage_par), (mb & 1) * 2048)] for mb in range(4)]
            ws = []
            for t in range(NB):
                b, off = (16 + (t & 1), (t >> 1) * 2048) if t < 6 else (18, 0)
                for j in range(2):
                    ws.append(["ds_read_b64_tr_b16 %s, %s offset:%d" % (v(g.wf(st, t) + 2 * j, 2), v(b), wslot * K1_WST + off + j * 1024)])
            return xs[:1] + ws + xs[1:]
        for role in (0, 1):
            ops = []
            def a_half(h, tag):
                ops.extend([tag, tag])
                if h == 0:
                    return [["s_mov_b32 m0, s46", "s_nop 0", "buffer_load_dwordx4 v3, s[8:11], s36 offen lds"],
                            ["buffer_load_dwordx4 v4, s[8:11], s36 offen offset:1024 lds", "s_add_u32 s34, s36, 32768"]]
                return [["s_add_u32 m0, s46, 2048", "s_add_u32 s36, s36, 128", "buffer_load_dwordx4 v3, s[8:11], s34 offen lds"],
                        ["buffer_load_dwordx4 v4, s[8:11], s34 offen offset:1024 lds", "s_add_u32 s46, s46, 32768",
                         "s_cmp_ge_u32 s46, 98304", "s_cselect_b32 s38, 98304, 0", "s_sub_u32 s46, s46, s38"]]
            def w_st(slot, tag, role=role, rowb=rowb):
                if role: return []
                ops.extend([tag, tag])
                return [["s_add_u32 m0, s35, %d" % (slot * K1_WST), "s_nop 0", "buffer_load_dwordx4 v5, s[12:15], s37 offen lds"],
                        ["buffer_load_dwordx4 v6, s[12:15], s37 offen offset:1024 lds", "s_add_u32 s37, s37, %d" % (32 * rowb)]]
            def emit(fs):
                for f in fs:
                    for i in f: A(i)
            def younger(tags):
                last = max([i for i, t in enumerate(ops) if t in tags] + [-1])
                return len(ops) - 1 - last
            if role == 0:
                A("s_cmp_ge_u32 s28, %d" % NB)
                A("s_cbranch_scc1 L_k1_%s_role1" % typ)
            else:
                A.label("L_k1_%s_role1" % typ)
            ops.extend(["row", "row"])
            emit(w_st(0, "W0") + a_half(0, "A0") + a_half(1, "A0") + w_st(1, "W1") + a_half(0, "A1") + a_half(1, "A1")
                 + w_st(2, "W2") + w_st(3, "W3") + a_half(0, "A2") + a_half(1, "A2"))
            if "nopf" not in OPT:
                A("v_lshlrev_b32 v7, 6, v1")
                A("s_lshl_b32 s38, s31, 12")
                srd(A, 16, 22, 1024 * 6144)
                A("buffer_load_dword v254, v7, s[16:19], s38 offen")
                srd(A, 16, 24, 1024 * 7168)
                A("buffer_load_dword v255, v7, s[16:19], s38 offen")
                ops.extend(["pf", "pf"])
            A("v_and_b32 v2, 15, v1")
            A("v_lshlrev_b32 v8, 7, v2")
            A("v_lshrrev_b32 v2, 1, v2")
            A("v_lshrrev_b32 v7, 4, v1")
            A("v_xor_b32 v2, v2, v7")
            A("v_lshl_add_u32 v2, v2, 4, v8")
            A("s_lshl_b32 s38, s32, 12")
            A("s_sub_u32 s39, %d, s38" % (7 * 4096))
            A("v_add_u32 v8, s38, v2")
            A("v_add_u32 v10, s39, v2")
            A("v_xor_b32 v9, 64, v8")
            A("v_xor_b32 v11, 64, v10")
            tr_base(A, 18, 1, 7)
            A("s_mul_i32 s40, s33, %d" % ((3 if typ == "qkv" else 4) * 2048))
            A("s_add_u32 s40, s40, %d" % K1_WR)
            A("v_add_u32 v16, s40, v18")
            A("v_xor_b32 v17, 32, v16")
            A("s_lshl_b32 s40, s33, 5")
            A("v_xor_b32 v18, s40, v18")
            A("v_add_u32 v18, %d, v18" % (K1_WR + 3 * 2048))
            for i in range(16 * NB + 8):
                A("v_mov_b32 %s, 0" % v(CS + i))
            A("s_lshl_b32 s48, s33, 1")
            A("s_add_u32 s48, s48, s32")
            A("s_and_b32 s48, s48, 3")
            A("s_mov_b32 s49, 0x3f803f80")
            A("s_mov_b32 s47, 0")
            A("s_mov_b32 s50, 32768")
            A("s_mov_b32 s51, 32768")
            srd(A, 52, 6, 65536, WS_SYNC)
            srd(A, 56, 4, 256)
            A("s_waitcnt vmcnt(%d)" % younger(["row"]))
            k1_stats(A, TS)
            A("s_lshl_b32 s38, s31, 3")
            A("s_add_u32 s39, s38, 32768")
            A("s_add_u32 s40, s38, 49152")
            A("s_lshl_b32 s38, s31, 4")
            A("s_mov_b64 exec, 1")
            A("buffer_store_dwordx2 %s, v20, s[52:55], s39 offen sc1" % v(TS, 2))
            A("buffer_store_dwordx2 %s, v20, s[52:55], s40 offen sc1" % v(TS + 2, 2))
            A("buffer_store_dwordx4 v[20:23], v20, s[52:55], s38 offen sc1")
            A("s_mov_b64 exec, -1")
            ops.extend(["st"] * 3)
            def period(p, vm, do_a, do_w, do_read=True, extra=None, g=g, NB=NB):
                n = 4 * NB
                if do_read:
                    A("s_waitcnt vmcnt(%d) lgkmcnt(0)" % vm)
                    A("s_barrier")
                else:
                    A("s_waitcnt lgkmcnt(0)")
                if extra: extra()
                rd = reads((p + 1) & 1, (p + 1) & 3, (p + 1) & 1) if do_read else []
                if p < 0:
                    emit(rd)
                    return
                dm = (w_st(p & 3, "W%d" % (p + 4)) if do_w else []) + (a_half(1 - (p & 1), "A%d" % ((p + 5) // 2)) if do_a else [])
                if p & 1 == 0:
                    upd = ["v_add_u32 v8, s50, v8", "v_add_u32 v10, s50, v10"]
                else:
                    upd = ["v_add_u32 v9, s50, v9", "v_add_u32 v11, s50, v11", "s_add_u32 s47, s47, s50",
                           "s_cmp_eq_u32 s47, 65536", "s_cselect_b32 s50, 0xffff0000, s51"]
                slots = [[] for _ in range(n)]
                for i, f in enumerate(rd):
                    slots[(i * (n - 4)) // len(rd)].append(f)
                for i, f in enumerate(dm):
                    slots[min(((2 * i + 1) * n) // (2 * len(dm)), n - 1)].append(f)
                slots[n - 2].append(upd)
                for c in range(2 if "nocs" not in OPT else 0):
                    lab = A.newlabel("cs")
                    f = ["s_cmp_lg_u32 s48, %d" % (p & 3), "s_cbranch_scc1 %s" % lab]
                    for i in range(2 * c, 2 * c + 2):
                        for t in range(NB):
                            if "csvalu" in OPT:
                                w_, t0 = v(g.wf(p & 1, t) + i), 12 + 2 * (t & 1)
                                f += ["v_lshlrev_b32 %s, 16, %s" % (v(t0), w_), "v_and_b32 %s, 0xffff0000, %s" % (v(t0 + 1), w_),
                                      "v_add_f32 %s, %s, %s" % (v(t0), v(t0), v(t0 + 1)), "v_add_f32 %s, %s, %s" % (v(CS + t), v(CS + t), v(t0))]
                                continue
                            f.append("v_dot2c_f32_bf16 %s, s49, %s" % (v(CS + t), v(g.wf(p & 1, t) + i)))
                    f.append(lab + ":")
                    slots[(n // 4) + c * (n // 2) + 1].append(f)
                for i, m in enumerate(g.mfmas(p & 1)):
                    A(m)
                    for f in slots[i]:
                        for ins in f: A(ins)
            L = 2 if role else 4
            period(-1, younger(["A0", "W0"]), False, False)
            stamp(A, 1)
            period(0, younger(["W1"]), False, True)
            period(1, younger(["A1", "W2"]), True, True)
            period(2, younger(["W3"]), True, True)
            period(3, younger(["A2", "W4", "st"]), True, True)
            if role == 0:
                lab = A.newlabel("sig")
                A("s_cmp_lg_u32 s28, 0")
                A("s_cbranch_scc1 %s" % lab)
                A("v_mov_b32 v12, 1")
                A("v_mov_b32 v13, 0")
                A("s_mov_b64 exec, 1")
                A("buffer_atomic_add v12, v13, s[56:59], 0 offen sc1")
                A("s_mov_b64 exec, -1")
                A.label(lab)
            lab = A.newlabel("k1loop")
            A("s_mov_b32 s44, 6")
            A.label(lab)
            for p in range(4, 8):
                period(p, 2 * L, True, True)
            A("s_sub_u32 s44, s44, 1")
            A("s_cmp_lg_u32 s44, 0")
            A("s_cbranch_scc1 %s" % lab)
            def poll0():
                A("v_mov_b32 v3, 0")
                A("buffer_load_dword v4, v3, s[56:59], 0 offen sc1")
            def poll1(typ=typ, EX=EX):
                l1, l2 = A.newlabel("pa"), A.newlabel("pb")
                A.label(l1)
                A("v_readfirstlane_b32 s38, v4")
                A("s_cmp_ge_u32 s38, 256")
                A("s_cbranch_scc1 %s" % l2)
                A("buffer_load_dword v4, v3, s[56:59], 0 offen sc1")
                A("s_waitcnt vmcnt(0)")
                A("s_branch %s" % l1)
                A.label(l2)
                A("v_and_b32 v12, 15, v1")
                A("v_lshlrev_b32 v12, 3, v12")
                A("v_lshrrev_b32 v13, 4, v1")
                A("s_lshl_b32 s38, s29, 11")
                A("s_add_u32 s38, s38, %d" % (32768 if typ == "qkv" else 49152))
                A("s_lshl_b32 s39, s32, 8")
                A("s_sub_u32 s40, %d, s39" % (7 * 256))
                A("s_add_u32 s39, s39, s38")
                A("s_add_u32 s40, s40, s38")
                for mb in range(4):
                    A("buffer_load_dwordx2 %s, v12, s[52:55], %s offen offset:%d sc1" % (v(EX + 2 * mb, 2), s(39 + (mb >> 1)), (mb & 1) * 128))
                if typ == "qkv":
                    A("v_lshlrev_b32 v13, 5, v13")
                    for mb in range(4):
                        for h in range(2):
                            A("buffer_load_dwordx4 %s, v13, s[52:55], %s offen offset:%d sc1" % (v(EX + 8 + 8 * mb + 4 * h, 4), s(39 + (mb >> 1)), (mb & 1) * 128 + h * 16))
                else:
                    srd(A, 16, 26, 3584 * 2)
                    A("v_lshlrev_b32 v13, 3, v13")
                    A("s_mul_i32 s41, s30, 448")
                    A("s_lshl_b32 s42, s33, 8")
                    A("s_add_u32 s42, s42, s41")
                    A("s_lshl_b32 s43, s33, 5")
                    A("s_add_u32 s43, s43, s41")
                    for t in range(6):
                        A("buffer_load_dwordx2 %s, v13, s[16:19], s42 offen offset:%d" % (v(EX + 8 + 2 * t, 2), t * 32))
                    A("buffer_load_dwordx2 %s, v13, s[16:19], s43 offen offset:192" % v(EX + 20, 2))
                A("s_load_dwordx2 s[40:41], s[0:1], 16")
                A("s_load_dwordx2 s[42:43], s[0:1], 48")
            period(28, 2 * L, False, False, extra=poll0)
            period(29, L + 1, False, False)
            period(30, 0, False, False, extra=poll1)
            period(31, None, False, False, do_read=False)
            if role == 0:
                A("s_branch L_k1_%s_epi" % typ)
        A.label("L_k1_%s_epi" % typ)
        stamp(A, 2)
        A("v_lshlrev_b32 v7, 6, v1")
        A("s_lshl_b32 s38, s31, 12")
        srd(A, 16, 42, 3584 * 2048)
        A("buffer_load_dword v3, v7, s[16:19], s38 offen")
        srd(A, 16, 40, 1024 * 2048)
        A("buffer_load_dword v4, v7, s[16:19], s38 offen")
        for sw in ("16", "32"):
            for t in range(NB):
                A("v_mov_b32 %s, %s" % (v(FR0 + t), v(CS + t)))
            A("s_nop 0")
            for t in range(NB):
                A("v_permlane%s_swap_b32 %s, %s" % (sw, v(CS + t), v(FR0 + t)))
            for t in range(NB):
                A("v_add_f32 %s, %s, %s" % (v(CS + t), v(CS + t), v(FR0 + t)))
        A("v_and_b32 v2, 15, v1")
        A("v_lshlrev_b32 v2, 2, v2")
        A("s_lshl_b32 s38, s28, 9")
        A("s_add_u32 s38, s38, %d" % K1_SP)
        A("v_add_u32 v7, s38, v2")
        for t in range(NB):
            A("ds_write_b32 v7, %s offset:%d" % (v(CS + t), t * 64))
        A("s_lshl_b32 s38, s33, 11")
        A("s_add_u32 s38, s38, %d" % K1_SP)
        A("v_add_u32 v2, s38, v2")
        A("v_and_b32 v7, 48, v1")
        A("v_add_u32 v7, s38, v7")
        A("s_waitcnt lgkmcnt(0)")
        A("s_barrier")
        CR, CT = FR0, FR0 + 28
        nfull = 4 if typ == "qkv" else 7
        for lo, hi in ((0, 4), (4, nfull)):
            for t in range(lo, hi):
                for w in range(4):
                    d = CR + 4 * t if w == 0 else CT + 12 * (t - lo) + 4 * (w - 1)
                    A("ds_read_b128 %s, v7 offset:%d" % (v(d, 4), w * 512 + t * 64))
            if typ == "qkv" and lo == 4:
                for t in range(2):
                    for w in range(4):
                        A("ds_read_b32 %s, v2 offset:%d" % (v(CR + 16 + 4 * t + w), w * 512 + (4 + t) * 64))
            A("s_waitcnt lgkmcnt(0)")
            for t in range(lo, hi):
                for w in range(3):
                    for i in range(0, 4, 2):
                        A("v_pk_add_f32 %s, %s, %s" % (v(CR + 4 * t + i, 2), v(CR + 4 * t + i, 2), v(CT + 12 * (t - lo) + 4 * w + i, 2)))
            if typ == "qkv" and lo == 4:
                for t in range(2):
                    c = CR + 16 + 4 * t
                    A("v_add_f32 %s, %s, %s" % (v(c), v(c), v(c + 1)))
                    A("v_add_f32 %s, %s, %s" % (v(c + 2), v(c + 2), v(c + 3)))
                    A("v_add_f32 %s, %s, %s" % (v(c), v(c), v(c + 2)))
        A("s_waitcnt vmcnt(2)")
        srd(A, 12, 6, ACT_BYTES, WS_ACT)
        A("s_lshl_b32 s39, s29, 14")
        A("s_lshl_b32 s40, s32, 11")
        A("s_sub_u32 s41, %d, s40" % (7 * 2048))
        A("s_add_u32 s40, s40, s39")
        A("s_add_u32 s41, s41, s39")
        if typ == "qkv":
            T = FR0 + 28
            def norm(mb, nb):
                c = g.accr(mb, nb)
                for i in range(4):
                    if nb < 4:
                        A("v_mul_f32 %s, %s, %s" % (v(T + i), v(EX + 2 * mb + 1), v(CR + 4 * nb + i)))
                    else:
                        A("v_mul_f32 %s, %s, %s" % (v(T + i), v(EX + 8 + 8 * mb + 2 * i + 1), v(CR + 16 + 4 * (nb - 4))))
                for i in range(4):
                    r = EX + 2 * mb if nb < 4 else EX + 8 + 8 * mb + 2 * i
                    A("v_fma_f32 %s, %s, %s, %s" % (v(c + i), v(c + i), v(r), v(T + i)))
            def pack(d, c0, c1):
                for h, c in enumerate((c0, c1)):
                    A("v_cvt_pk_bf16_f32 %s, %s, %s" % (v(d + 2 * h), v(c), v(c + 1)))
                    A("v_cvt_pk_bf16_f32 %s, %s, %s" % (v(d + 2 * h + 1), v(c + 2), v(c + 3)))
            srd(A, 16, 6, 8 * MB_, WS_KV)
            A("s_lshl_b32 s34, s29, 4")
            A("s_add_u32 s34, s34, s30")
            A("s_lshl_b32 s35, s34, 16")
            A("s_lshl_b32 s38, s33, 15")
            A("s_add_u32 s38, s38, s35")
            A("s_lshl_b32 s39, s32, 12")
            A("s_sub_u32 s43, %d, s39" % (7 * 4096))
            A("s_add_u32 s42, s38, s39")
            A("s_add_u32 s38, s38, s43")
            A("s_lshl_b32 s36, s33, 16")
            A("s_add_u32 s39, s39, s36")
            A("s_add_u32 s43, s43, s36")
            A("v_add_u32 v12, s43, v19")
            A("v_add_u32 v13, s39, v19")
            for grp in range(2):
                for k in range(4):
                    d = T + 4 + 4 * (grp * 4 + k)
                    if k < 2:
                        mb = 2 * grp + k
                        norm(mb, 2); norm(mb, 3)
                        pack(d, g.accr(mb, 2), g.accr(mb, 3))
                    else:
                        norm(2 * grp, 2 + k); norm(2 * grp + 1, 2 + k)
                        pack(d, g.accr(2 * grp, 2 + k), g.accr(2 * grp + 1, 2 + k))
                    A("buffer_store_dwordx4 %s, v19, s[16:19], %s offen offset:%d sc1" % (v(d, 4), "s38" if grp else "s42", k * 1024))
                    A("ds_write_b128 %s, %s offset:%d" % (v(12 + grp), v(d, 4), k * 1024))
            QR, OA, MA = 192, 208, 14
            for mb in range(4):
                norm(mb, 0); norm(mb, 1)
            for mb in range(4):
                pack(QR + 4 * mb, g.accr(mb, 0), g.accr(mb, 1))
            A("s_waitcnt lgkmcnt(0)")
            A("s_barrier")
            stamp(A, 3)
            A("v_and_b32 v2, 15, v1")
            A("v_lshrrev_b32 v7, 4, v1")
            A("v_lshlrev_b32 v7, 2, v7")
            A("s_mov_b64 s[50:51], s[40:41]")
            for r in range(4):
                A("v_add_u32 v8, %d, v7" % r)
                A("v_cmp_lt_u32 %s, v2, v8" % s(36 + 2 * r, 2))
            A("s_mov_b64 s[44:45], -1")
            A("s_mov_b64 s[46:47], 0")
            A("v_mov_b32 v7, 0xff800000")
            for i in range(4):
                A("v_mov_b32 %s, 0x3f803f80" % v(188 + i))
                A("v_mov_b32 %s, v7" % v(MA + i))
            for i in range(48):
                A("v_mov_b32 %s, 0" % v(OA + i))
            A("s_mov_b32 s48, %s" % f32((32 ** -0.5) * math.log2(math.e)))
            A("s_add_u32 s20, s32, 1")
            A("s_sub_u32 s21, 8, s32")
            A("s_mov_b32 s22, 0")
            A("s_lshl_b32 s23, s34, 7")
            A("s_add_u32 s23, s23, 16384")
            A("v_mov_b32 v18, 0")
            A("v_mov_b32 v20, 1")
            A("s_waitcnt vmcnt(0)")
            A("s_mov_b64 exec, 1")
            A("buffer_atomic_add v20, v18, s[52:55], s23 offen sc1")
            A("s_mov_b64 exec, -1")
            A.label("L_k1_part")
            attn_body(A, "atB", QR + 8, OA + 24, MA + 2, 13, 21)
            A("s_cmp_lg_u32 s22, 0")
            A("s_cbranch_scc1 L_k1_nofetch")
            A("s_cmp_eq_u32 s29, 0")
            A("s_cbranch_scc1 L_k1_nofetch")
            A("s_sub_u32 s23, s23, 2048")
            A.label("L_k1_kvpoll")
            A("buffer_load_dword v20, v18, s[52:55], s23 offen sc1")
            A("s_waitcnt vmcnt(0)")
            A("v_readfirstlane_b32 s24, v20")
            A("s_cmp_lt_u32 s24, 8")
            A("s_cbranch_scc1 L_k1_kvpoll")
            A("s_lshl_b32 s24, s28, 13")
            A("s_add_u32 s25, s35, s24")
            A("s_sub_u32 s25, s25, 0x100000")
            A("s_lshl_b32 s26, s33, 15")
            A("s_add_u32 s24, s24, s26")
            for h in range(2):
                A("s_add_u32 m0, s24, %d" % (32768 + h * 4096))
                A("s_add_u32 s26, s25, %d" % (h * 4096))
                for i in range(4):
                    A("buffer_load_dwordx4 v19, s[16:19], s26 offen offset:%d sc1 lds" % (i * 1024))
            A.label("L_k1_nofetch")
            attn_body(A, "atA", QR, OA, MA, 12, 20)
            A("s_cmp_lg_u32 s22, 0")
            A("s_cbranch_scc1 L_k1_atdone")
            A("s_cmp_eq_u32 s29, 0")
            A("s_cbranch_scc1 L_k1_atdone")
            A("s_mov_b32 s22, 1")
            for r in range(6):
                A("s_not_b64 %s, %s" % (s(36 + 2 * r, 2), s(36 + 2 * r, 2)))
            A("s_mov_b32 s24, s20")
            A("s_mov_b32 s20, s21")
            A("s_mov_b32 s21, s24")
            A("v_add_u32 v8, 32768, v12")
            A("v_add_u32 v12, 32768, v13")
            A("v_mov_b32 v13, v8")
            A("s_waitcnt vmcnt(0)")
            A("s_barrier")
            A("s_branch L_k1_part")
            A.label("L_k1_atdone")
            A("s_lshl_b32 s24, s30, 1")
            A("s_add_u32 s24, s24, s33")
            A("s_add_u32 s24, s24, 112")
            A("s_lshl_b32 s24, s24, 17")
            A("s_add_u32 s50, s50, s24")
            A("s_add_u32 s51, s51, s24")
            A("s_nop 4")
            for q in (2, 3, 0, 1):
                o = OA + 12 * q
                A("v_rcp_f32 v8, %s" % v(o + 8))
                A("s_nop 0")
                for i in range(8):
                    A("v_mul_f32 %s, %s, v8" % (v(o + i), v(o + i)))
                pack(28 + 4 * q, o, o + 4)
                A("buffer_store_dwordx4 %s, v19, s[12:15], %s offen offset:%d sc1" % (v(28 + 4 * q, 4), s(50 + (q >> 1)), (q & 1) * 1024))
            stamp_out(A, 0, 6, 6, "s28")
            A("s_endpgm")
        else:
            stamp(A, 3)
            BR, T = FR0 + 28, FR0 + 56
            for t in range(7):
                b = EX + 8 + 2 * t
                A("v_lshlrev_b32 %s, 16, %s" % (v(BR + 4 * t), v(b)))
                A("v_and_b32 %s, 0xffff0000, %s" % (v(BR + 4 * t + 1), v(b)))
                A("v_lshlrev_b32 %s, 16, %s" % (v(BR + 4 * t + 2), v(b + 1)))
                A("v_and_b32 %s, 0xffff0000, %s" % (v(BR + 4 * t + 3), v(b + 1)))
            c0 = -2.0 * math.sqrt(2.0 / math.pi) * math.log2(math.e)
            A("v_mov_b32 v2, %s" % f32(c0))
            A("s_mov_b32 s45, %s" % f32(c0 * 0.044715))
            A("s_mul_i32 s38, s30, 7")
            A("s_lshl_b32 s38, s38, 17")
            A("s_add_u32 s40, s40, s38")
            A("s_add_u32 s41, s41, s38")
            A("s_lshl_b32 s39, s33, 3")
            A("s_add_u32 s39, s39, 0x%x" % (3 << 17))
            A("s_add_u32 s42, s40, s39")
            A("s_add_u32 s43, s41, s39")
            A("s_lshl_b32 s39, s33, 19")
            A("s_add_u32 s40, s40, s39")
            A("s_add_u32 s41, s41, s39")
            def act(mb, nb, t):
                c = g.accr(mb, nb)
                for i in range(4):
                    A("v_fma_f32 %s, %s, %s, %s" % (v(t + i), v(EX + 2 * mb + 1), v(CR + 4 * nb + i), v(BR + 4 * nb + i)))
                for i in range(4):
                    A("v_fma_f32 %s, %s, %s, %s" % (v(c + i), v(c + i), v(EX + 2 * mb), v(t + i)))
                gelu4(A, c, t, 2, 45)
            k = 0
            for pr in range(3):
                for mb in range(4):
                    d = T + 8 + 4 * (k % 6); k += 1
                    for h in range(2):
                        c = g.accr(mb, 2 * pr + h)
                        act(mb, 2 * pr + h, T + 4 * h)
                        A("v_cvt_pk_bf16_f32 %s, %s, %s" % (v(d + 2 * h), v(c), v(c + 1)))
                        A("v_cvt_pk_bf16_f32 %s, %s, %s" % (v(d + 2 * h + 1), v(c + 2), v(c + 3)))
                    A("buffer_store_dwordx4 %s, v19, s[12:15], %s offen offset:%d sc1" % (v(d, 4), s(40 + (mb >> 1)), (mb & 1) * 1024))
                if pr < 2:
                    A("s_add_u32 s40, s40, 0x20000")
                    A("s_add_u32 s41, s41, 0x20000")
            for mb in range(4):
                d = T + 8 + 4 * (k % 6); k += 1
                c = g.accr(mb, 6)
                act(mb, 6, T + 4 * (mb & 1))
                A("v_cvt_pk_bf16_f32 %s, %s, %s" % (v(d), v(c), v(c + 1)))
                A("v_cvt_pk_bf16_f32 %s, %s, %s" % (v(d + 1), v(c + 2), v(c + 3)))
                A("buffer_store_dwordx2 %s, v19, s[12:15], %s offen offset:%d sc1" % (v(d, 2), s(42 + (mb >> 1)), (mb & 1) * 1024))
            stamp_out(A, 0, 6, 6, "s28")
    A.label("L_k1_done")
    A("s_endpgm")
    kernel_desc(A, name, 256, 96)
    return "; @launch kernel=%s grid=(256,1,1) block=(512,1,1) lds=163840" % name

def main2(out):
    A = Asm()
    A.raw('.amdgcn_target "amdgcn-amd-amdhsa--gfx950"')
    ls = [gen_k1(A), gen_gemm2(A)]
    hdr = "; generated by dev/k1.py\n" + "\n".join(ls) + "\n"
    open(out, "w").write(hdr + A.text())

if __name__ == "__main__":
    main2(sys.argv[1] if len(sys.argv) > 1 else "cdna_kernels/%s.s" % NAME)
```

```python
from gen import *

STL = os.environ.get("STL", "start,p0,loop,epi").split(",")
def st(A, name):
    if name in STL: stamp(A, STL.index(name))

SCHEDS = {
 "a": {"pre": "W0 A0_0 A0_1 W1", "post": "A1_0 A1_1 W2", -1: "W3", 0: "A2_0 A2_1 W4", 1: "W5 A3_0 S0 S1 S2 S3", 2: "W6 A3_1 S4 S5 S6 S7",
       3: "W7 A4_0", 4: "W8 A4_1", 5: "W9 A5_0", 6: "W10 A5_1", 7: "W11 A6_0"},
 "b": {"pre": "W0 A0_0 A0_1 W1", "post": "A1_0 A1_1 W2 S0 S1 S2 S3", -1: "W3 S4 S5 S6 S7", 0: "A2_0 A2_1 W4", 1: "W5 A3_0", 2: "W6 A3_1",
       3: "W7 A4_0", 4: "W8 A4_1", 5: "W9 A5_0", 6: "W10 A5_1", 7: "W11 A6_0"},
 "c": {"pre": "W0 A0_0 A0_1 W1", "pre2": "S0 S1 S2 S3 S4 S5 S6 S7", "post": "A1_0 A1_1 W2", -1: "W3", 0: "A2_0 A2_1 W4", 1: "W5 A3_0", 2: "W6 A3_1",
       3: "W7 A4_0", 4: "W8 A4_1", 5: "W9 A5_0", 6: "W10 A5_1", 7: "W11 A6_0"},
 "d": {"pre": "W0 A0_0 A0_1 W1", "post": "A1_0 A1_1 W2", -1: "W3", 0: "A2_0 A2_1 W4 S0 S1", 1: "W5 A3_0 S2 S3", 2: "W6 A3_1 S4 S5",
       3: "W7 A4_0 S6 S7", 4: "W8 A4_1", 5: "W9 A5_0", 6: "W10 A5_1", 7: "W11 A6_0"},
}
SCHED = SCHEDS[os.environ.get("SCHED", "a")]
WS_KV, WS_SYNC = 8 * MB_, 48 * MB_
K1_WR, K1_WST, K1_SP = 98304, 14336, 155648

def reduce64(A, x, t, op="v_add_f32"):
    for r in (8, 4, 2, 1):
        A("s_nop 1")
        A("%s_dpp %s, %s, %s row_ror:%d row_mask:0xf bank_mask:0xf" % (op, v(x), v(x), v(x), r))
    xlane_sum(A, x, t, op=op, ror8=False)

def k1_stats(A, T):
    X, a_, b_, m_, q_ = T + 8, T + 24, T + 25, T + 26, T + 27
    for i in range(8):
        A("v_lshlrev_b32 %s, 16, %s" % (v(X + 2 * i), v(T + i)))
        A("v_and_b32 %s, 0xffff0000, %s" % (v(X + 2 * i + 1), v(T + i)))
    A("v_add_f32 %s, %s, %s" % (v(a_), v(X), v(X + 1)))
    A("v_add_f32 %s, %s, %s" % (v(b_), v(X + 2), v(X + 3)))
    for i in range(4, 16, 2):
        A("v_add_f32 %s, %s, %s" % (v(a_), v(a_), v(X + i)))
        A("v_add_f32 %s, %s, %s" % (v(b_), v(b_), v(X + i + 1)))
    A("v_add_f32 %s, %s, %s" % (v(a_), v(a_), v(b_)))
    reduce64(A, a_, b_)
    A("v_mul_f32 %s, %s, %s" % (v(m_), f32(1.0 / 1024), v(a_)))
    for i in range(16):
        A("v_sub_f32 %s, %s, %s" % (v(X + i), v(X + i), v(m_)))
    A("v_mul_f32 %s, %s, %s" % (v(a_), v(X), v(X)))
    A("v_mul_f32 %s, %s, %s" % (v(b_), v(X + 1), v(X + 1)))
    for i in range(2, 16, 2):
        A("v_fmac_f32 %s, %s, %s" % (v(a_), v(X + i), v(X + i)))
        A("v_fmac_f32 %s, %s, %s" % (v(b_), v(X + i + 1), v(X + i + 1)))
    A("v_add_f32 %s, %s, %s" % (v(a_), v(a_), v(b_)))
    reduce64(A, a_, b_)
    A("v_mul_f32 %s, %s, %s" % (v(q_), f32(1.0 / 1024), v(a_)))
    def std(dst, var):
        A("v_mov_b32 %s, %s" % (v(dst), v(var)))
        rnd_bf16(A, dst)
        A("v_add_f32 %s, %s, %s" % (v(dst), f32(1e-5), v(dst)))
        rnd_bf16(A, dst)
        A("v_sqrt_f32 %s, %s" % (v(dst), v(dst)))
        A("s_nop 0")
        rnd_bf16(A, dst)
    s1, mb_, s2, m2 = X, X + 1, X + 2, X + 3
    std(s1, q_)
    A("v_rcp_f32 %s, %s" % (v(T), v(s1)))
    A("v_mov_b32 %s, %s" % (v(mb_), v(m_)))
    rnd_bf16(A, mb_)
    A("v_mul_f32 %s, -%s, %s" % (v(T + 1), v(T), v(mb_)))
    A("v_sub_f32 %s, %s, %s" % (v(m2), v(m_), v(mb_)))
    A("v_mul_f32 %s, %s, %s" % (v(m2), v(m2), v(T)))
    rnd_bf16(A, m2)
    A("v_mul_f32 %s, %s, %s" % (v(q_), v(q_), v(T)))
    A("v_mul_f32 %s, %s, %s" % (v(q_), v(q_), v(T)))
    std(s2, q_)
    A("v_rcp_f32 %s, %s" % (v(s2), v(s2)))
    A("v_fma_f32 %s, %s, %s, %s" % (v(m2), v(m2), v(s1), v(mb_)))
    A("v_mul_f32 %s, %s, %s" % (v(T + 2), v(T), v(s2)))
    A("v_mul_f32 %s, -%s, %s" % (v(T + 3), v(T + 2), v(m2)))

def attn_body(A, tag, Qr, O, M, base, sN):
    S_, KF, VF, ONES, NINF = 28, 156, 172, 188, 7
    def Sr(j, qb, kb): return S_ + 16 * j + 8 * qb + 4 * kb
    def rd(F, j, off):
        for k in range(2):
            A("ds_read_b128 %s, %s offset:%d" % (v(F + 8 * (j & 1) + 4 * k, 4), v(base), j * 4096 + off + k * 1024))
    l1, l2, l3 = (A.newlabel(tag + x) for x in "abc")
    rd(KF, 0, 0)
    for j in range(8):
        if j < 7:
            rd(KF, j + 1, 0)
            A("s_waitcnt lgkmcnt(2)")
        else:
            A("s_waitcnt lgkmcnt(0)")
        for qb in range(2):
            for kb in range(2):
                A("v_mfma_f32_16x16x32_bf16 %s, %s, %s, 0" % (v(Sr(j, qb, kb), 4), v(KF + 8 * (j & 1) + 4 * kb, 4), v(Qr + 4 * qb, 4)))
        if j < 7:
            A("s_cmp_eq_u32 %s, %d" % (s(sN), j + 1))
            A("s_cbranch_scc1 %s" % l1)
    A.label(l1)
    rd(VF, 0, 2048)
    A("s_nop 7")
    for r in range(4):
        A("v_cndmask_b32 %s, %s, v7, %s" % (v(Sr(0, 0, 0) + r), v(Sr(0, 0, 0) + r), s(36 + 2 * r, 2)))
        A("v_cndmask_b32 %s, %s, v7, s[44:45]" % (v(Sr(0, 0, 1) + r), v(Sr(0, 0, 1) + r)))
        A("v_cndmask_b32 %s, %s, v7, s[46:47]" % (v(Sr(0, 1, 0) + r), v(Sr(0, 1, 0) + r)))
        A("v_cndmask_b32 %s, %s, v7, %s" % (v(Sr(0, 1, 1) + r), v(Sr(0, 1, 1) + r), s(36 + 2 * r, 2)))
    A("v_mov_b32 v8, %s" % v(M))
    A("v_mov_b32 v9, %s" % v(M + 1))
    for j in range(8):
        for i in range(0, 8, 2):
            for qb in range(2):
                A("v_max3_f32 %s, %s, %s, %s" % (v(8 + qb), v(8 + qb), v(Sr(j, qb, 0) + i), v(Sr(j, qb, 0) + i + 1)))
        if j < 7:
            A("s_cmp_eq_u32 %s, %d" % (s(sN), j + 1))
            A("s_cbranch_scc1 %s" % l2)
    A.label(l2)
    for sw in ("16", "32"):
        A("v_mov_b32 v10, v8")
        A("v_mov_b32 v11, v9")
        A("s_nop 0")
        A("v_permlane%s_swap_b32 v8, v10" % sw)
        A("v_permlane%s_swap_b32 v9, v11" % sw)
        A("v_max_f32 v8, v8, v10")
        A("v_max_f32 v9, v9, v11")
    for qb in range(2):
        A("v_sub_f32 %s, %s, %s" % (v(10 + qb), v(M + qb), v(8 + qb)))
        A("v_mul_f32 %s, s48, %s" % (v(10 + qb), v(10 + qb)))
        A("v_exp_f32 %s, %s" % (v(10 + qb), v(10 + qb)))
        A("v_mov_b32 %s, %s" % (v(M + qb), v(8 + qb)))
        A("v_mul_f32 %s, s48, %s" % (v(8 + qb), v(8 + qb)))
    for qb in range(2):
        for i in range(12):
            A("v_mul_f32 %s, %s, %s" % (v(O + 12 * qb + i), v(O + 12 * qb + i), v(10 + qb)))
    for j in range(8):
        if j < 7:
            rd(VF, j + 1, 2048)
        for qb in range(2):
            b = Sr(j, qb, 0)
            for i in range(8):
                A("v_fma_f32 %s, %s, s48, -%s" % (v(b + i), v(b + i), v(8 + qb)))
            for i in range(8):
                A("v_exp_f32 %s, %s" % (v(b + i), v(b + i)))
        for qb in range(2):
            b = Sr(j, qb, 0)
            for i in range(4):
                A("v_cvt_pk_bf16_f32 %s, %s, %s" % (v(b + i), v(b + 2 * i), v(b + 2 * i + 1)))
        A("s_waitcnt lgkmcnt(%d)" % (2 if j < 7 else 0))
        for qb in range(2):
            for d in range(3):
                aop = v(VF + 8 * (j & 1) + 4 * d, 4) if d < 2 else v(ONES, 4)
                c = v(O + 12 * qb + 4 * d, 4)
                A("v_mfma_f32_16x16x32_bf16 %s, %s, %s, %s" % (c, aop, v(Sr(j, qb, 0), 4), c))
        if j < 7:
            A("s_cmp_eq_u32 %s, %d" % (s(sN), j + 1))
            A("s_cbranch_scc1 %s" % l3)
    A.label(l3)

def gen_k1(A):
    name = "k1_kernel"
    kernel_begin(A, name)
    A("s_cmp_ge_u32 s2, 256")
    A("s_cbranch_scc1 L_k1_done")
    st(A, "start")
    A("s_load_dwordx4 s[20:23], s[0:1], 0")
    A("s_load_dwordx4 s[24:27], s[0:1], 32")
    A("s_load_dwordx4 s[4:7], s[0:1], 72")
    A("s_load_dwordx2 s[90:91], s[0:1], 48")
    A("s_load_dwordx2 s[92:93], s[0:1], 16")
    A("v_and_b32 v1, 63, v0")
    A("v_lshrrev_b32 v2, 6, v0")
    A("v_lshlrev_b32 v19, 4, v1")
    A("v_readfirstlane_b32 s28, v2")
    A("s_and_b32 s29, s2, 1")
    A("s_lshl_b32 s29, s29, 2")
    A("s_bfe_u32 s30, s2, 0x20003")
    A("s_add_u32 s29, s29, s30")
    A("s_bfe_u32 s30, s2, 0x20001")
    A("s_lshl_b32 s30, s30, 2")
    A("s_lshr_b32 s31, s2, 6")
    A("s_add_u32 s30, s30, s31")
    A("s_and_b32 s32, s28, 3")
    A("s_lshr_b32 s33, s28, 2")
    A("s_lshl_b32 s31, s2, 3")
    A("s_add_u32 s31, s31, s28")
    A("s_lshl_b32 s34, s31, 11")
    A("s_waitcnt lgkmcnt(0)")
    st(A, "karg")
    srd(A, 8, 20, 4 * MB_)
    TS = 160
    A("buffer_load_dwordx4 %s, v19, s[8:11], s34 offen" % v(TS, 4))
    A("buffer_load_dwordx4 %s, v19, s[8:11], s34 offen offset:1024" % v(TS + 4, 4))
    A("v_lshrrev_b32 v3, 3, v1")
    A("v_lshlrev_b32 v3, 11, v3")
    A("v_and_b32 v7, 7, v1")
    A("v_lshrrev_b32 v2, 4, v1")
    A("v_xor_b32 v7, v7, v2")
    A("v_lshl_add_u32 v3, v7, 4, v3")
    A("v_xor_b32 v4, 64, v3")
    A("v_add_u32 v4, %d, v4" % (8 * 2048 - 1024))
    A("s_lshl_b32 s36, s29, 19")
    A("s_lshl_b32 s34, s28, 16")
    A("s_add_u32 s36, s36, s34")
    A("s_lshl_b32 s46, s28, 12")
    A("s_mov_b32 s37, 0")
    A("s_lshl_b32 s35, s28, 11")
    A("s_add_u32 s35, s35, %d" % K1_WR)
    w_chunk(A, 5, 1, 7)
    A("v_lshrrev_b32 v6, 4, v1")
    A("v_lshlrev_b32 v6, 3, v6")
    A("v_bfe_u32 v7, v1, 2, 2")
    A("v_add_u32 v6, v6, v7")
    A("s_bitcmp1_b32 s2, 5")
    A("s_cbranch_scc1 L_k1_w1")
    ACC = 20
    CSO = 65536
    for typ in ("qkv", "w1"):
        NB = 6 if typ == "qkv" else 7
        FR0 = ACC + 16 * NB
        EX = FR0 + 8 * (4 + NB)
        rowb = 6144 if typ == "qkv" else 7168
        SL, SD, CR = 224, 220, FR0
        if typ == "w1":
            A.label("L_k1_w1")
        if typ == "qkv":
            srd(A, 12, 22, 1024 * 6144)
            A("s_cmp_ge_u32 s28, 3")
            A("s_cselect_b32 s38, 1, 0")
            A("s_mul_i32 s39, s38, 3")
            A("s_sub_u32 s39, s28, s39")
            A("s_lshl_b32 s39, s39, 11")
            A("s_lshl_b32 s40, s30, 1")
            A("s_add_u32 s40, s40, s38")
            A("s_lshl_b32 s40, s40, 6")
            A("s_add_u32 s39, s39, s40")
        else:
            srd(A, 12, 24, 1024 * 7168)
            A("s_mul_i32 s39, s30, 448")
            A("s_lshl_b32 s40, s28, 6")
            A("s_add_u32 s39, s39, s40")
        A("s_movk_i32 s40, %d" % rowb)
        A("v_mul_lo_u32 v6, v6, s40")
        A("v_add3_u32 v5, v5, v6, s39")
        A("v_add_u32 v6, %d, v5" % (4 * rowb - 1024))
        A("s_movk_i32 s40, 7168")
        A("s_movk_i32 s49, 0x3f80")
        g = Gemm(A, "k1", 4, NB, 1, 4, 32, ACC, FR0, None, None, 0, swap_fn=(lambda nb: nb >= 4) if typ == "qkv" else None)
        def reads(stage_par, wslot, st, NB=NB, g=g):
            xs = [["ds_read_b128 %s, %s offset:%d" % (v(g.xf(st, mb), 4), v(8 + 2 * (mb >> 1) + stage_par), (mb & 1) * 2048)] for mb in range(4)]
            ws = []
            for t in range(NB):
                b, off = (16 + (t & 1), (t >> 1) * 2048) if t < 6 else (0, 0)
                for j in range(2):
                    ws.append(["ds_read_b64_tr_b16 %s, %s offset:%d" % (v(g.wf(st, t) + 2 * j, 2), v(b), wslot * K1_WST + off + j * 1024)])
            return xs[:1] + ws + xs[1:]
        for role in (0, 1):
            ops = []
            def a_half(h, tag):
                ops.extend([tag, tag])
                if h == 0:
                    return [["s_mov_b32 m0, s46", "s_nop 0", "buffer_load_dwordx4 v3, s[8:11], s36 offen lds"],
                            ["buffer_load_dwordx4 v4, s[8:11], s36 offen offset:1024 lds", "s_add_u32 s34, s36, 32768"]]
                return [["s_add_u32 m0, s46, 2048", "s_add_u32 s36, s36, 128", "buffer_load_dwordx4 v3, s[8:11], s34 offen lds"],
                        ["buffer_load_dwordx4 v4, s[8:11], s34 offen offset:1024 lds", "s_add_u32 s46, s46, 32768",
                         "s_cmp_ge_u32 s46, 98304", "s_cselect_b32 s38, 98304, 0", "s_sub_u32 s46, s46, s38"]]
            def w_st(slot, tag, role=role, rowb=rowb):
                if role: return []
                ops.extend([tag, tag])
                return [["s_add_u32 m0, s35, %d" % (slot * K1_WST), "s_nop 0", "buffer_load_dwordx4 v5, s[12:15], s37 offen lds"],
                        ["buffer_load_dwordx4 v6, s[12:15], s37 offen offset:1024 lds", "s_add_u32 s37, s37, %d" % (32 * rowb)]]
            def emit(fs):
                for f in fs:
                    for i in f: A(i)
            def younger(tags):
                last = max([i for i, t in enumerate(ops) if t in tags] + [-1])
                return len(ops) - 1 - last
            if role == 0:
                A("s_cmp_ge_u32 s28, %d" % NB)
                A("s_cbranch_scc1 L_k1_%s_role1" % typ)
            else:
                A.label("L_k1_%s_role1" % typ)
            ops.extend(["row", "row"])
            def item(t):
                if t[0] == "W": return w_st(int(t[1:]) & 3, t)
                if t[0] == "A": return a_half(int(t[-1]), t[:-2])
                i = int(t[1:])
                ops.append("pf")
                return [["buffer_load_dwordx4 %s, v18, s[16:19], s41 offen" % v(SL + 4 * i, 4), "s_add_u32 s41, s41, s42"]]
            def items(key):
                return [f for t in SCHED.get(key, "").split() for f in item(t)]
            emit(items("pre"))
            A("s_cmp_lt_u32 s2, 96")
            A("s_cselect_b32 s16, s22, s24")
            A("s_cselect_b32 s17, s23, s25")
            A("s_cselect_b32 s38, 6144, s40")
            A("s_cselect_b32 s39, 0, 96")
            A("s_lshl_b32 s18, s38, 10")
            A("s_cmp_ge_u32 s2, 208")
            A("s_cselect_b32 s18, 0, s18")
            A("s_mov_b32 s19, 0x00020000")
            A("s_sub_u32 s39, s2, s39")
            A("s_and_b32 s41, s39, 1")
            A("s_lshl_b32 s41, s41, 3")
            A("s_add_u32 s41, s41, s28")
            A("s_lshl_b32 s41, s41, 6")
            A("s_mul_i32 s41, s41, s38")
            A("s_lshr_b32 s39, s39, 1")
            A("s_lshl_b32 s39, s39, 7")
            A("s_add_u32 s41, s41, s39")
            A("v_lshrrev_b32 v18, 3, v1")
            A("v_mul_lo_u32 v18, v18, s38")
            A("v_and_b32 v2, 7, v1")
            A("v_lshl_add_u32 v18, v2, 4, v18")
            A("s_lshl_b32 s42, s38, 3")
            emit(items("pre2"))
            A("v_and_b32 v2, 15, v1")
            A("v_and_b32 v7, 1, v1")
            A("v_lshlrev_b32 v7, 4, v7")
            A("v_lshlrev_b32 v7, v7, s49")
            A("v_lshrrev_b32 v2, 1, v2")
            for i in range(4):
                A("v_cmp_eq_u32 vcc, %d, v2" % i)
                A("v_cndmask_b32 %s, 0, v7, vcc" % v(12 + i))
            A("v_and_b32 v2, 15, v1")
            A("v_lshlrev_b32 v8, 7, v2")
            A("v_lshrrev_b32 v2, 1, v2")
            A("v_lshrrev_b32 v7, 4, v1")
            A("v_xor_b32 v2, v2, v7")
            A("v_lshl_add_u32 v2, v2, 4, v8")
            A("s_lshl_b32 s38, s32, 12")
            A("s_sub_u32 s39, %d, s38" % (7 * 4096))
            A("v_add_u32 v8, s38, v2")
            A("v_add_u32 v10, s39, v2")
            A("v_xor_b32 v9, 64, v8")
            A("v_xor_b32 v11, 64, v10")
            tr_base(A, 0, 1, 7)
            A("s_mul_i32 s40, s33, %d" % ((3 if typ == "qkv" else 4) * 2048))
            A("s_add_u32 s40, s40, %d" % K1_WR)
            A("v_add_u32 v16, s40, v0")
            A("v_xor_b32 v17, 32, v16")
            if typ == "w1":
                A("v_and_b32 v0, 0xffffffe7, v0")
                A("v_and_b32 v7, 1, v1")
                A("v_lshlrev_b32 v7, 5, v7")
                A("v_xor_b32 v0, v0, v7")
                A("v_and_b32 v7, 2, v1")
                A("v_lshl_add_u32 v0, v7, 2, v0")
                A("s_lshl_b32 s40, s33, 4")
                A("s_add_u32 s40, s40, %d" % (K1_WR + 3 * 2048))
                A("v_add_u32 v0, s40, v0")
            for i in range(4):
                A("v_mov_b32 %s, 0" % v(20 + i))
            A("s_mov_b32 s47, 0")
            A("s_mov_b32 s50, 32768")
            A("s_mov_b32 s51, 32768")
            srd(A, 52, 6, 131072, WS_SYNC)
            srd(A, 56, 4, 256)
            st(A, "issued")
            A("s_waitcnt vmcnt(%d)" % younger(["row"]))
            st(A, "row")
            k1_stats(A, TS)
            st(A, "stats")
            for i in range(1, 4):
                A("v_cmp_eq_u32 vcc, %d, v1" % i)
                A("v_cndmask_b32 %s, %s, %s, vcc" % (v(TS), v(TS), v(TS + i)))
            A("v_lshlrev_b32 v2, 13, v1")
            A("s_lshl_b32 s38, s31, 2")
            A("s_add_u32 s39, s38, 32768")
            A("s_lshl_b32 s38, s31, 4")
            A("s_mov_b64 exec, 15")
            A("buffer_store_dword %s, v2, s[52:55], s39 offen sc1" % v(TS))
            A("s_mov_b64 exec, 1")
            A("buffer_store_dwordx4 v[20:23], v20, s[52:55], s38 offen sc1")
            A("s_mov_b64 exec, -1")
            ops.extend(["st"] * 2)
            emit(items("post"))
            def period(p, vm, do_a, do_w, rd=None, extra=None, g=g, NB=NB):
                n = 4 * NB
                A("s_waitcnt vmcnt(%d) lgkmcnt(0)" % vm)
                A("s_barrier")
                if extra: extra()
                if rd is None:
                    rd = reads((p + 1) & 1, (p + 1) & 3, (p + 1) & 1)
                if p < 0:
                    emit(rd + items(-1))
                    return
                if do_a == "sched":
                    dm = items(p)
                else:
                    dm = (w_st(p & 3, "W%d" % (p + 4)) if do_w else []) + (a_half(1 - (p & 1), "A%d" % ((p + 5) // 2)) if do_a else [])
                if p & 1 == 0:
                    upd = ["v_add_u32 v8, s50, v8", "v_add_u32 v10, s50, v10"]
                else:
                    upd = ["v_add_u32 v9, s50, v9", "v_add_u32 v11, s50, v11", "s_add_u32 s47, s47, s50",
                           "s_cmp_eq_u32 s47, 65536", "s_cselect_b32 s50, 0xffff0000, s51"]
                slots = [[] for _ in range(n)]
                for i, f in enumerate(rd):
                    slots[(i * (n - 4)) // len(rd)].append(f)
                for i, f in enumerate(dm):
                    slots[min(((2 * i + 1) * n) // (2 * len(dm)), n - 1)].append(f)
                slots[n - 2].append(upd)
                for i, m in enumerate(g.mfmas(p & 1)):
                    A(m if p else m[:m.rindex(",")] + ", 0")
                    for f in slots[i]:
                        for ins in f: A(ins)
            L = 2 if role else 4
            period(-1, younger(["A0", "W0"]), False, False)
            st(A, "p0")
            def cs_mfma():
                for i in range(8):
                    A("v_mfma_f32_16x16x32_bf16 %s, v[12:15], %s, %s" % (v(SD, 4), v(SL + 4 * i, 4), v(SD, 4) if i else "0"))
                A("s_lshl_b32 s38, s28, 10")
                A("s_add_u32 s38, s38, %d" % K1_SP)
                A("v_add_u32 v2, s38, v19")
            def cs_red():
                if True:
                    lab = A.newlabel("csr")
                    A("s_cmp_lg_u32 s28, 7")
                    A("s_cbranch_scc1 %s" % lab)
                    A("v_lshrrev_b32 v2, 3, v1")
                    A("v_lshlrev_b32 v2, 4, v2")
                    A("v_bfe_u32 v7, v1, 2, 1")
                    A("v_lshl_add_u32 v2, v7, 8, v2")
                    A("v_and_b32 v7, 3, v1")
                    A("v_lshl_add_u32 v2, v7, 2, v2")
                    A("v_add_u32 v2, %d, v2" % K1_SP)
                    for i in range(16):
                        A("ds_read_b32 %s, v2 offset:%d" % (v(SL + i), (i >> 1) * 1024 + (i & 1) * 128))
                    A("s_lshr_b32 s38, s2, 1")
                    A("s_lshl_b32 s38, s38, 8")
                    A("s_and_b32 s39, s2, 1")
                    A("s_mul_i32 s39, s39, 32768")
                    A("s_add_u32 s38, s38, s39")
                    A("s_add_u32 s38, s38, %d" % CSO)
                    A("v_lshlrev_b32 v2, 2, v1")
                    A("s_waitcnt lgkmcnt(0)")
                    for st in (8, 4, 2, 1):
                        for i in range(st):
                            A("v_add_f32 %s, %s, %s" % (v(SL + i), v(SL + i), v(SL + i + st)))
                    A("buffer_store_dword %s, v2, s[52:55], s38 offen sc1" % v(SL))
                    A.label(lab)
            for p in range(8):
                need = ["W%d" % (p + 1), "A%d" % ((p + 1) // 2)] + (["pf", "st"] if p == 6 else [])
                period(p, younger(need), "sched", True, extra=cs_mfma if p == 6 else cs_red if (p == 7 and role) else None)
                if p == 6: A("ds_write_b128 v2, %s" % v(SD, 4))
                if p == 3: st(A, "p4")
            assert younger(["W9", "A4"]) >= 2 * L or role
            lab = A.newlabel("k1loop")
            A("s_mov_b32 s44, 5")
            A.label(lab)
            for p in range(4, 8):
                period(p, 2 * L, True, True)
            if role == 1:
                l2 = A.newlabel("sig")
                A("s_lshl_b32 s38, s44, 3")
                A("s_add_u32 s38, s38, s28")
                A("s_cmp_lg_u32 s38, %d" % (5 * 8 + 7))
                A("s_cbranch_scc1 %s" % l2)
                A("v_mov_b32 v12, 1")
                A("v_mov_b32 v13, 0")
                A("s_mov_b64 exec, 1")
                A("buffer_atomic_add v12, v13, s[56:59], 0 offen sc1")
                A("s_mov_b64 exec, -1")
                A.label(l2)
            A("s_sub_u32 s44, s44, 1")
            A("s_cmp_lg_u32 s44, 0")
            A("s_cbranch_scc1 %s" % lab)
            def poll0():
                A("v_mov_b32 v3, 0")
                A("buffer_load_dword v4, v3, s[56:59], 0 offen sc1")
            def fetch(typ=typ):
                l1, l2, l3 = A.newlabel("pa"), A.newlabel("pb"), A.newlabel("pc")
                A("s_cmp_lg_u32 s28, 7")
                A("s_cbranch_scc1 %s" % l3)
                A.label(l1)
                A("v_readfirstlane_b32 s38, v4")
                A("s_cmp_ge_u32 s38, 256")
                A("s_cbranch_scc1 %s" % l2)
                A("buffer_load_dword v4, v3, s[56:59], 0 offen sc1")
                A("s_waitcnt vmcnt(0)")
                A("s_branch %s" % l1)
                A.label(l2)
                A("s_lshl_b32 s38, s29, 10")
                A("s_add_u32 s38, s38, %d" % (32768 if typ == "qkv" else 49152))
                A("s_add_u32 s41, s38, %d" % (8192 - 1024))
                A("s_mov_b32 m0, %d" % K1_SP)
                if typ == "qkv":
                    A("v_lshrrev_b32 v2, 4, v1")
                    A("v_and_b32 v7, 0xf0, v19")
                    A("v_lshl_add_u32 v2, v2, 12, v7")
                    A("s_lshl_b32 s39, s30, 8")
                    A("s_add_u32 s39, s39, %d" % (CSO - 2048))
                else:
                    A("v_mov_b32 v2, v19")
                    A("s_mul_i32 s39, s30, 896")
                    A("s_add_u32 s39, s39, %d" % (CSO - 2048 + 3072 * 4))
                A("s_add_u32 s40, s39, %d" % (32768 - 1024))
                A("buffer_load_dwordx4 v19, s[52:55], s38 offen sc1 lds")
                A("buffer_load_dwordx4 v19, s[52:55], s41 offen offset:1024 sc1 lds")
                A("buffer_load_dwordx4 v2, s[52:55], s39 offen offset:2048 sc1 lds")
                A("buffer_load_dwordx4 v2, s[52:55], s40 offen offset:3072 sc1 lds")
                if typ == "w1":
                    srd(A, 16, 26, 3584 * 2)
                    A("s_mov_b32 m0, %d" % (K1_SP + 4096))
                    A("s_mul_i32 s39, s30, 448")
                    A("buffer_load_dwordx4 v19, s[16:19], s39 offen lds")
                A.label(l3)
            def par_addr(typ=typ):
                A("v_lshlrev_b32 v7, 6, v1")
                A("s_lshl_b32 s38, s31, 12")
                srd(A, 16, 90, 3584 * 2048)
                A("buffer_load_dword v3, v7, s[16:19], s38 offen")
                srd(A, 16, 92, 1024 * 2048)
                A("buffer_load_dword v4, v7, s[16:19], s38 offen")
                A("s_lshl_b32 s38, s32, 7")
                A("s_sub_u32 s39, %d, s38" % (K1_SP + 7 * 128))
                A("s_add_u32 s38, s38, %d" % K1_SP)
                A("v_and_b32 v2, 15, v1")
                A("v_and_b32 v7, 48, v1")
                A("v_lshl_add_u32 v12, v2, 2, s38")
                A("v_lshl_add_u32 v13, v2, 2, s39")
                if typ == "qkv":
                    A("v_add_u32 v14, s38, v7")
                    A("v_add_u32 v15, s39, v7")
                    A("s_lshl_b32 s38, s33, 7")
                    A("s_add_u32 s38, s38, %d" % (K1_SP + 2048))
                    A("v_add_u32 v5, s38, v7")
                    A("v_lshl_add_u32 v6, v2, 2, s38")
                else:
                    A("s_lshl_b32 s38, s33, 9")
                    A("s_add_u32 s38, s38, %d" % (K1_SP + 2048))
                    A("v_add_u32 v5, s38, v7")
                    A("v_lshrrev_b32 v7, 1, v7")
                    A("s_lshl_b32 s38, s33, 8")
                    A("s_add_u32 s38, s38, %d" % (K1_SP + 4096))
                    A("v_add_u32 v14, s38, v7")
                    A("v_and_b32 v2, 16, v1")
                    A("v_lshrrev_b32 v7, 3, v1")
                    A("v_and_b32 v7, 4, v7")
                    A("v_add_u32 v2, v2, v7")
                    A("s_lshl_b32 s38, s33, 5")
                    A("s_add_u32 s38, s38, %d" % (K1_SP + 2048 + 384))
                    A("v_lshl_add_u32 v6, v2, 2, s38")
                    A("s_lshl_b32 s38, s33, 4")
                    A("s_add_u32 s38, s38, %d" % (K1_SP + 4096 + 192))
                    A("v_lshl_add_u32 v15, v2, 1, s38")
            pr = [["ds_read_b32 %s, %s offset:%d" % (v(EX + 2 * mb + h), v(12 + (mb >> 1)), (mb & 1) * 64 + h * 1024)] for mb in range(4) for h in range(2)]
            if typ == "qkv":
                C1 = CR + 18
                for h, c in enumerate((CR, C1)):
                    pr += [["ds_read_b128 %s, v5 offset:%d" % (v(c + 4 * t, 4), h * 1024 + (t >> 1) * 256 + (t & 1) * 64)] for t in range(4)]
                    pr += [["ds_read_b32 %s, v6 offset:%d" % (v(c + 16 + t), h * 1024 + 512 + t * 64)] for t in range(2)]
                pr += [["ds_read_b128 %s, %s offset:%d" % (v(EX + 8 + 8 * mb + 4 * h, 4), v(14 + (mb >> 1)), (mb & 1) * 64 + h * 1024)]
                       for mb in range(4) for h in range(2)]
            else:
                C1 = EX + 8
                for h, c in enumerate((CR, C1)):
                    pr += [["ds_read_b128 %s, %s offset:%d" % (v(c + 4 * t, 4), "v5" if t < 6 else "v6", h * 1024 + (t * 64 if t < 6 else 0))] for t in range(7)]
                pr += [["ds_read_b64 %s, %s offset:%d" % (v(CR + 28 + 2 * t, 2), "v14" if t < 6 else "v15", t * 32 if t < 6 else 0)] for t in range(7)]
            period(28, 2 * L, False, False, extra=poll0 if role else None)
            period(29, 0 if role else L, False, False, extra=fetch if role else None)
            period(30, 63 if role else 0, False, False, extra=par_addr)
            period(31, 2, False, False, rd=pr)
            if role == 0:
                A("s_branch L_k1_%s_epi" % typ)
        A.label("L_k1_%s_epi" % typ)
        st(A, "loop")
        A("s_waitcnt lgkmcnt(0)")
        for i in range(0, 18 if typ == "qkv" else 28, 2):
            A("v_pk_add_f32 %s, %s, %s" % (v(CR + i, 2), v(CR + i, 2), v(C1 + i, 2)))
        srd(A, 12, 6, ACT_BYTES, WS_ACT)
        A("s_lshl_b32 s39, s29, 14")
        A("s_lshl_b32 s40, s32, 11")
        A("s_sub_u32 s41, %d, s40" % (7 * 2048))
        A("s_add_u32 s40, s40, s39")
        A("s_add_u32 s41, s41, s39")
        if typ == "qkv":
            T = 152
            def norm(mb, nb):
                c = g.accr(mb, nb)
                for i in (0, 2):
                    if nb < 4:
                        A("v_pk_mul_f32 %s, %s, %s op_sel:[0,1] op_sel_hi:[1,1]" % (v(T + i, 2), v(CR + 4 * nb + i, 2), v(EX + 2 * mb, 2)))
                    else:
                        A("v_pk_mul_f32 %s, %s, %s op_sel:[0,%d] op_sel_hi:[1,%d]" % (v(T + i, 2), v(EX + 12 + 8 * mb + i, 2), v(CR + 16, 2), nb - 4, nb - 4))
                for i in (0, 2):
                    if nb < 4:
                        A("v_pk_fma_f32 %s, %s, %s, %s op_sel_hi:[1,0,1]" % (v(c + i, 2), v(c + i, 2), v(EX + 2 * mb, 2), v(T + i, 2)))
                    else:
                        A("v_pk_fma_f32 %s, %s, %s, %s" % (v(c + i, 2), v(c + i, 2), v(EX + 8 + 8 * mb + i, 2), v(T + i, 2)))
            def pack(d, c0, c1):
                for h, c in enumerate((c0, c1)):
                    A("v_cvt_pk_bf16_f32 %s, %s, %s" % (v(d + 2 * h), v(c), v(c + 1)))
                    A("v_cvt_pk_bf16_f32 %s, %s, %s" % (v(d + 2 * h + 1), v(c + 2), v(c + 3)))
            srd(A, 16, 6, 8 * MB_, WS_KV)
            A("s_lshl_b32 s34, s29, 4")
            A("s_add_u32 s34, s34, s30")
            A("s_lshl_b32 s35, s34, 16")
            A("s_lshl_b32 s38, s33, 15")
            A("s_add_u32 s38, s38, s35")
            A("s_lshl_b32 s39, s32, 12")
            A("s_sub_u32 s43, %d, s39" % (7 * 4096))
            A("s_add_u32 s42, s38, s39")
            A("s_add_u32 s38, s38, s43")
            A("s_lshl_b32 s36, s33, 16")
            A("s_add_u32 s39, s39, s36")
            A("s_add_u32 s43, s43, s36")
            A("v_add_u32 v12, s43, v19")
            A("v_add_u32 v13, s39, v19")
            for grp in range(2):
                for k in range(4):
                    d = T + 4 + 4 * (grp * 4 + k)
                    if k < 2:
                        mb = 2 * grp + k
                        norm(mb, 2); norm(mb, 3)
                        pack(d, g.accr(mb, 2), g.accr(mb, 3))
                    else:
                        norm(2 * grp, 2 + k); norm(2 * grp + 1, 2 + k)
                        pack(d, g.accr(2 * grp, 2 + k), g.accr(2 * grp + 1, 2 + k))
                    A("buffer_store_dwordx4 %s, v19, s[16:19], %s offen offset:%d sc1" % (v(d, 4), "s38" if grp else "s42", k * 1024))
                    A("ds_write_b128 %s, %s offset:%d" % (v(12 + grp), v(d, 4), k * 1024))
            QR, OA, MA = 192, 208, 14
            for mb in range(4):
                norm(mb, 0); norm(mb, 1)
            for mb in range(4):
                pack(QR + 4 * mb, g.accr(mb, 0), g.accr(mb, 1))
            A("s_waitcnt lgkmcnt(0)")
            A("s_barrier")
            st(A, "epi")
            A("v_and_b32 v2, 15, v1")
            A("v_lshrrev_b32 v7, 4, v1")
            A("v_lshlrev_b32 v7, 2, v7")
            A("s_mov_b64 s[50:51], s[40:41]")
            for r in range(4):
                A("v_add_u32 v8, %d, v7" % r)
                A("v_cmp_lt_u32 %s, v2, v8" % s(36 + 2 * r, 2))
            A("s_mov_b64 s[44:45], -1")
            A("s_mov_b64 s[46:47], 0")
            A("v_mov_b32 v7, 0xff800000")
            for i in range(4):
                A("v_mov_b32 %s, 0x3f803f80" % v(188 + i))
                A("v_mov_b32 %s, v7" % v(MA + i))
            for i in range(48):
                A("v_mov_b32 %s, 0" % v(OA + i))
            A("s_mov_b32 s48, %s" % f32((32 ** -0.5) * math.log2(math.e)))
            A("s_add_u32 s20, s32, 1")
            A("s_sub_u32 s21, 8, s32")
            A("s_mov_b32 s22, 0")
            A("s_lshl_b32 s23, s34, 7")
            A("s_add_u32 s23, s23, 16384")
            A("v_mov_b32 v18, 0")
            A("v_mov_b32 v20, 1")
            A("s_waitcnt vmcnt(0)")
            A("s_mov_b64 exec, 1")
            A("buffer_atomic_add v20, v18, s[52:55], s23 offen sc1")
            A("s_mov_b64 exec, -1")
            st(A, "at0")
            A.label("L_k1_part")
            attn_body(A, "atB", QR + 8, OA + 24, MA + 2, 13, 21)
            A("s_cmp_lg_u32 s22, 0")
            A("s_cbranch_scc1 L_k1_nofetch")
            A("s_cmp_eq_u32 s29, 0")
            A("s_cbranch_scc1 L_k1_nofetch")
            st(A, "at1")
            A("s_sub_u32 s23, s23, 2048")
            A.label("L_k1_kvpoll")
            A("buffer_load_dword v20, v18, s[52:55], s23 offen sc1")
            A("s_waitcnt vmcnt(0)")
            A("v_readfirstlane_b32 s24, v20")
            A("s_cmp_lt_u32 s24, 8")
            A("s_cbranch_scc1 L_k1_kvpoll")
            st(A, "at2")
            A("s_lshl_b32 s24, s28, 13")
            A("s_add_u32 s25, s35, s24")
            A("s_sub_u32 s25, s25, 0x100000")
            A("s_lshl_b32 s26, s33, 15")
            A("s_add_u32 s24, s24, s26")
            for h in range(2):
                A("s_add_u32 m0, s24, %d" % (32768 + h * 4096))
                A("s_add_u32 s26, s25, %d" % (h * 4096))
                for i in range(4):
                    A("buffer_load_dwordx4 v19, s[16:19], s26 offen offset:%d sc1 lds" % (i * 1024))
            A.label("L_k1_nofetch")
            attn_body(A, "atA", QR, OA, MA, 12, 20)
            A("s_cmp_lg_u32 s22, 0")
            A("s_cbranch_scc1 L_k1_atdone")
            A("s_cmp_eq_u32 s29, 0")
            A("s_cbranch_scc1 L_k1_atdone")
            st(A, "at3")
            A("s_mov_b32 s22, 1")
            for r in range(6):
                A("s_not_b64 %s, %s" % (s(36 + 2 * r, 2), s(36 + 2 * r, 2)))
            A("s_mov_b32 s24, s20")
            A("s_mov_b32 s20, s21")
            A("s_mov_b32 s21, s24")
            A("v_add_u32 v8, 32768, v12")
            A("v_add_u32 v12, 32768, v13")
            A("v_mov_b32 v13, v8")
            A("s_waitcnt vmcnt(0)")
            A("s_barrier")
            st(A, "at4")
            A("s_branch L_k1_part")
            A.label("L_k1_atdone")
            A("s_lshl_b32 s24, s30, 1")
            A("s_add_u32 s24, s24, s33")
            A("s_add_u32 s24, s24, 112")
            A("s_lshl_b32 s24, s24, 17")
            A("s_add_u32 s50, s50, s24")
            A("s_add_u32 s51, s51, s24")
            A("s_nop 4")
            for q in (2, 3, 0, 1):
                o = OA + 12 * q
                A("v_rcp_f32 v8, %s" % v(o + 8))
                A("s_nop 0")
                for i in range(8):
                    A("v_mul_f32 %s, %s, v8" % (v(o + i), v(o + i)))
                pack(28 + 4 * q, o, o + 4)
                A("buffer_store_dwordx4 %s, v19, s[12:15], %s offen offset:%d sc1" % (v(28 + 4 * q, 4), s(50 + (q >> 1)), (q & 1) * 1024))
            stamp_out(A, 0, len(STL) + 2, 6, "s28")
            A("s_endpgm")
        else:
            st(A, "epi")
            BR, T = EX + 8, FR0 + 44
            for t in range(7):
                b = CR + 28 + 2 * t
                A("v_lshlrev_b32 %s, 16, %s" % (v(BR + 4 * t), v(b)))
                A("v_and_b32 %s, 0xffff0000, %s" % (v(BR + 4 * t + 1), v(b)))
                A("v_lshlrev_b32 %s, 16, %s" % (v(BR + 4 * t + 2), v(b + 1)))
                A("v_and_b32 %s, 0xffff0000, %s" % (v(BR + 4 * t + 3), v(b + 1)))
            c0 = -2.0 * math.sqrt(2.0 / math.pi) * math.log2(math.e)
            A("v_mov_b32 v8, %s" % f32(c0))
            A("v_mov_b32 v9, %s" % f32(c0 * 0.044715))
            A("s_mul_i32 s38, s30, 7")
            A("s_lshl_b32 s38, s38, 17")
            A("s_add_u32 s40, s40, s38")
            A("s_add_u32 s41, s41, s38")
            A("s_lshl_b32 s39, s33, 9")
            A("s_add_u32 s39, s39, 0x%x" % (3 << 17))
            A("s_add_u32 s42, s40, s39")
            A("s_add_u32 s43, s41, s39")
            A("s_lshl_b32 s39, s33, 19")
            A("s_add_u32 s40, s40, s39")
            A("s_add_u32 s41, s41, s39")
            A("v_and_b32 v10, 0xf0, v19")
            A("v_and_b32 v2, 16, v1")
            A("v_lshl_add_u32 v10, v2, 6, v10")
            A("v_and_b32 v2, 32, v1")
            A("v_lshl_add_u32 v10, v2, 3, v10")
            def act2(blks, d):
                P = [(g.accr(mb, nb) + i, T + 4 * h + i, mb, nb, i) for h, (mb, nb) in enumerate(blks) for i in (0, 2)]
                for c, t, mb, nb, i in P:
                    A("v_pk_fma_f32 %s, %s, %s, %s op_sel:[0,1,0] op_sel_hi:[1,1,1]" % (v(t, 2), v(CR + 4 * nb + i, 2), v(EX + 2 * mb, 2), v(BR + 4 * nb + i, 2)))
                for c, t, mb, nb, i in P:
                    A("v_pk_fma_f32 %s, %s, %s, %s op_sel_hi:[1,0,1]" % (v(c, 2), v(c, 2), v(EX + 2 * mb, 2), v(t, 2)))
                for c, t, mb, nb, i in P:
                    A("v_pk_mul_f32 %s, %s, %s" % (v(t, 2), v(c, 2), v(c, 2)))
                for c, t, mb, nb, i in P:
                    A("v_pk_fma_f32 %s, %s, v[8:9], v[8:9] op_sel:[0,1,0] op_sel_hi:[1,1,0]" % (v(t, 2), v(t, 2)))
                for c, t, mb, nb, i in P:
                    A("v_pk_mul_f32 %s, %s, %s" % (v(t, 2), v(t, 2), v(c, 2)))
                for i in range(8): A("v_exp_f32 %s, %s" % (v(T + i), v(T + i)))
                for c, t, mb, nb, i in P:
                    A("v_pk_add_f32 %s, %s, 1.0 op_sel_hi:[1,0]" % (v(t, 2), v(t, 2)))
                for i in range(8): A("v_rcp_f32 %s, %s" % (v(T + i), v(T + i)))
                for c, t, mb, nb, i in P:
                    A("v_pk_mul_f32 %s, %s, %s" % (v(c, 2), v(c, 2), v(t, 2)))
                for k_, (c, t, mb, nb, i) in enumerate(P):
                    A("v_cvt_pk_bf16_f32 %s, %s, %s" % (v(d + k_), v(c), v(c + 1)))
            k = 0
            for pr in range(3):
                for mb in range(4):
                    d = T + 8 + 4 * (k % 6); k += 1
                    act2([(mb, 2 * pr), (mb, 2 * pr + 1)], d)
                    A("buffer_store_dwordx4 %s, v19, s[12:15], %s offen offset:%d sc1" % (v(d, 4), s(40 + (mb >> 1)), (mb & 1) * 1024))
                if pr < 2:
                    A("s_add_u32 s40, s40, 0x20000")
                    A("s_add_u32 s41, s41, 0x20000")
            for h in range(2):
                d = T + 8 + 4 * (k % 6); k += 1
                act2([(2 * h, 6), (2 * h + 1, 6)], d)
                A("s_nop 1")
                A("v_permlane16_swap_b32 %s, %s" % (v(d), v(d + 2)))
                A("v_permlane16_swap_b32 %s, %s" % (v(d + 1), v(d + 3)))
                A("buffer_store_dwordx4 %s, v10, s[12:15], %s offen sc1" % (v(d, 4), s(42 + h)))
            stamp_out(A, 0, len(STL) + 2, 6, "s28")
    A.label("L_k1_done")
    A("s_endpgm")
    kernel_desc(A, name, 256, 96)
    return "; @launch kernel=%s grid=(256,1,1) block=(512,1,1) lds=163840" % name

def main2(out):
    A = Asm()
    A.raw('.amdgcn_target "amdgcn-amd-amdhsa--gfx950"')
    ls = [gen_k1(A), gen_gemm2(A)]
    hdr = "; generated by dev/k1.py\n" + "\n".join(ls) + "\n"
    open(out, "w").write(hdr + A.text())

if __name__ == "__main__":
    main2(sys.argv[1] if len(sys.argv) > 1 else "cdna_kernels/%s.s" % NAME)
```

```python
from gen import *

STL = os.environ.get("STL", "start,p0,loop,epi").split(",")
def st(A, name):
    if name in STL: stamp(A, STL.index(name))

SCHEDS = {
 "a": {"pre": "W0 A0_0 A0_1 W1", "post": "A1_0 A1_1 W2", -1: "W3", 0: "A2_0 A2_1 W4", 1: "W5 A3_0 S0 S1 S2 S3", 2: "W6 A3_1 S4 S5 S6 S7",
       3: "W7 A4_0", 4: "W8 A4_1", 5: "W9 A5_0", 6: "W10 A5_1", 7: "W11 A6_0"},
 "b": {"pre": "W0 A0_0 A0_1 W1", "post": "A1_0 A1_1 W2 S0 S1 S2 S3", -1: "W3 S4 S5 S6 S7", 0: "A2_0 A2_1 W4", 1: "W5 A3_0", 2: "W6 A3_1",
       3: "W7 A4_0", 4: "W8 A4_1", 5: "W9 A5_0", 6: "W10 A5_1", 7: "W11 A6_0"},
 "c": {"pre": "W0 A0_0 A0_1 W1", "pre2": "S0 S1 S2 S3 S4 S5 S6 S7", "post": "A1_0 A1_1 W2", -1: "W3", 0: "A2_0 A2_1 W4", 1: "W5 A3_0", 2: "W6 A3_1",
       3: "W7 A4_0", 4: "W8 A4_1", 5: "W9 A5_0", 6: "W10 A5_1", 7: "W11 A6_0"},
 "d": {"pre": "W0 A0_0 A0_1 W1", "post": "A1_0 A1_1 W2", -1: "W3", 0: "A2_0 A2_1 W4 S0 S1", 1: "W5 A3_0 S2 S3", 2: "W6 A3_1 S4 S5",
       3: "W7 A4_0 S6 S7", 4: "W8 A4_1", 5: "W9 A5_0", 6: "W10 A5_1", 7: "W11 A6_0"},
}
SCHED = SCHEDS[os.environ.get("SCHED", "a")]
WS_KV, WS_SYNC = 8 * MB_, 48 * MB_
K1_WR, K1_WST, K1_SP = 98304, 14336, 155648

def reduce64(A, x, t, op="v_add_f32"):
    for r in (8, 4, 2, 1):
        A("s_nop 1")
        A("%s_dpp %s, %s, %s row_ror:%d row_mask:0xf bank_mask:0xf" % (op, v(x), v(x), v(x), r))
    xlane_sum(A, x, t, op=op, ror8=False)

def k1_stats(A, T):
    X, a_, b_, m_, q_ = T + 8, T + 24, T + 25, T + 26, T + 27
    for i in range(8):
        A("v_lshlrev_b32 %s, 16, %s" % (v(X + 2 * i), v(T + i)))
        A("v_and_b32 %s, 0xffff0000, %s" % (v(X + 2 * i + 1), v(T + i)))
    A("v_add_f32 %s, %s, %s" % (v(a_), v(X), v(X + 1)))
    A("v_add_f32 %s, %s, %s" % (v(b_), v(X + 2), v(X + 3)))
    for i in range(4, 16, 2):
        A("v_add_f32 %s, %s, %s" % (v(a_), v(a_), v(X + i)))
        A("v_add_f32 %s, %s, %s" % (v(b_), v(b_), v(X + i + 1)))
    A("v_add_f32 %s, %s, %s" % (v(a_), v(a_), v(b_)))
    reduce64(A, a_, b_)
    A("v_mul_f32 %s, %s, %s" % (v(m_), f32(1.0 / 1024), v(a_)))
    for i in range(16):
        A("v_sub_f32 %s, %s, %s" % (v(X + i), v(X + i), v(m_)))
    A("v_mul_f32 %s, %s, %s" % (v(a_), v(X), v(X)))
    A("v_mul_f32 %s, %s, %s" % (v(b_), v(X + 1), v(X + 1)))
    for i in range(2, 16, 2):
        A("v_fmac_f32 %s, %s, %s" % (v(a_), v(X + i), v(X + i)))
        A("v_fmac_f32 %s, %s, %s" % (v(b_), v(X + i + 1), v(X + i + 1)))
    A("v_add_f32 %s, %s, %s" % (v(a_), v(a_), v(b_)))
    reduce64(A, a_, b_)
    A("v_mul_f32 %s, %s, %s" % (v(q_), f32(1.0 / 1024), v(a_)))
    def std(dst, var):
        A("v_mov_b32 %s, %s" % (v(dst), v(var)))
        rnd_bf16(A, dst)
        A("v_add_f32 %s, %s, %s" % (v(dst), f32(1e-5), v(dst)))
        rnd_bf16(A, dst)
        A("v_sqrt_f32 %s, %s" % (v(dst), v(dst)))
        A("s_nop 0")
        rnd_bf16(A, dst)
    s1, mb_, s2, m2 = X, X + 1, X + 2, X + 3
    std(s1, q_)
    A("v_rcp_f32 %s, %s" % (v(T), v(s1)))
    A("v_mov_b32 %s, %s" % (v(mb_), v(m_)))
    rnd_bf16(A, mb_)
    A("v_mul_f32 %s, -%s, %s" % (v(T + 1), v(T), v(mb_)))
    A("v_sub_f32 %s, %s, %s" % (v(m2), v(m_), v(mb_)))
    A("v_mul_f32 %s, %s, %s" % (v(m2), v(m2), v(T)))
    rnd_bf16(A, m2)
    A("v_mul_f32 %s, %s, %s" % (v(q_), v(q_), v(T)))
    A("v_mul_f32 %s, %s, %s" % (v(q_), v(q_), v(T)))
    std(s2, q_)
    A("v_rcp_f32 %s, %s" % (v(s2), v(s2)))
    A("v_fma_f32 %s, %s, %s, %s" % (v(m2), v(m2), v(s1), v(mb_)))
    A("v_mul_f32 %s, %s, %s" % (v(T + 2), v(T), v(s2)))
    A("v_mul_f32 %s, -%s, %s" % (v(T + 3), v(T + 2), v(m2)))

def attn_body(A, tag, Qr, O, M, base, sN):
    S_, KF, VF, ONES, NINF = 28, 156, 172, 188, 7
    def Sr(j, qb, kb): return S_ + 16 * j + 8 * qb + 4 * kb
    def rd(F, j, off):
        for k in range(2):
            A("ds_read_b128 %s, %s offset:%d" % (v(F + 8 * (j & 1) + 4 * k, 4), v(base), j * 4096 + off + k * 1024))
    l1, l2, l3 = (A.newlabel(tag + x) for x in "abc")
    rd(KF, 0, 0)
    for j in range(8):
        if j < 7:
            rd(KF, j + 1, 0)
            A("s_waitcnt lgkmcnt(2)")
        else:
            A("s_waitcnt lgkmcnt(0)")
        for qb in range(2):
            for kb in range(2):
                A("v_mfma_f32_16x16x32_bf16 %s, %s, %s, 0" % (v(Sr(j, qb, kb), 4), v(KF + 8 * (j & 1) + 4 * kb, 4), v(Qr + 4 * qb, 4)))
        if j < 7:
            A("s_cmp_eq_u32 %s, %d" % (s(sN), j + 1))
            A("s_cbranch_scc1 %s" % l1)
    A.label(l1)
    rd(VF, 0, 2048)
    A("s_nop 7")
    for r in range(4):
        A("v_cndmask_b32 %s, %s, v7, %s" % (v(Sr(0, 0, 0) + r), v(Sr(0, 0, 0) + r), s(36 + 2 * r, 2)))
        A("v_cndmask_b32 %s, %s, v7, s[44:45]" % (v(Sr(0, 0, 1) + r), v(Sr(0, 0, 1) + r)))
        A("v_cndmask_b32 %s, %s, v7, s[46:47]" % (v(Sr(0, 1, 0) + r), v(Sr(0, 1, 0) + r)))
        A("v_cndmask_b32 %s, %s, v7, %s" % (v(Sr(0, 1, 1) + r), v(Sr(0, 1, 1) + r), s(36 + 2 * r, 2)))
    A("v_mov_b32 v8, %s" % v(M))
    A("v_mov_b32 v9, %s" % v(M + 1))
    for j in range(8):
        for i in range(0, 8, 2):
            for qb in range(2):
                A("v_max3_f32 %s, %s, %s, %s" % (v(8 + qb), v(8 + qb), v(Sr(j, qb, 0) + i), v(Sr(j, qb, 0) + i + 1)))
        if j < 7:
            A("s_cmp_eq_u32 %s, %d" % (s(sN), j + 1))
            A("s_cbranch_scc1 %s" % l2)
    A.label(l2)
    for sw in ("16", "32"):
        A("v_mov_b32 v10, v8")
        A("v_mov_b32 v11, v9")
        A("s_nop 0")
        A("v_permlane%s_swap_b32 v8, v10" % sw)
        A("v_permlane%s_swap_b32 v9, v11" % sw)
        A("v_max_f32 v8, v8, v10")
        A("v_max_f32 v9, v9, v11")
    for qb in range(2):
        A("v_sub_f32 %s, %s, %s" % (v(10 + qb), v(M + qb), v(8 + qb)))
        A("v_mul_f32 %s, s48, %s" % (v(10 + qb), v(10 + qb)))
        A("v_exp_f32 %s, %s" % (v(10 + qb), v(10 + qb)))
        A("v_mov_b32 %s, %s" % (v(M + qb), v(8 + qb)))
        A("v_mul_f32 %s, s48, %s" % (v(8 + qb), v(8 + qb)))
    for qb in range(2):
        for i in range(12):
            A("v_mul_f32 %s, %s, %s" % (v(O + 12 * qb + i), v(O + 12 * qb + i), v(10 + qb)))
    for j in range(8):
        if j < 7:
            rd(VF, j + 1, 2048)
        for qb in range(2):
            b = Sr(j, qb, 0)
            for i in range(8):
                A("v_fma_f32 %s, %s, s48, -%s" % (v(b + i), v(b + i), v(8 + qb)))
            for i in range(8):
                A("v_exp_f32 %s, %s" % (v(b + i), v(b + i)))
        for qb in range(2):
            b = Sr(j, qb, 0)
            for i in range(4):
                A("v_cvt_pk_bf16_f32 %s, %s, %s" % (v(b + i), v(b + 2 * i), v(b + 2 * i + 1)))
        A("s_waitcnt lgkmcnt(%d)" % (2 if j < 7 else 0))
        for qb in range(2):
            for d in range(3):
                aop = v(VF + 8 * (j & 1) + 4 * d, 4) if d < 2 else v(ONES, 4)
                c = v(O + 12 * qb + 4 * d, 4)
                A("v_mfma_f32_16x16x32_bf16 %s, %s, %s, %s" % (c, aop, v(Sr(j, qb, 0), 4), c))
        if j < 7:
            A("s_cmp_eq_u32 %s, %d" % (s(sN), j + 1))
            A("s_cbranch_scc1 %s" % l3)
    A.label(l3)

G2R, G2ST = 4, 32768
SLP = int(os.environ.get("SLP", "8"))
G2_SP = int(os.environ.get("G2SP", "40"))
def g2_slot(sl): return (sl & 1) * 65536 + (sl >> 1) * G2ST
def g2_dma_w(A, slot):
    for ch in range(2):
        A("s_add_u32 m0, s35, %d" % (g2_slot(slot) + 16384 + ch * 1024))
        A("s_nop 0")
        for i in range(2):
            A("buffer_load_dwordx4 %s, s[8:11], s37 offen offset:%d lds" % (v(14 + ch + 2 * i), i * 2048))
    A("s_add_u32 s37, s37, 0x20000")
    A("s_cmp_eq_u32 s37, 0x%x" % (3584 * 2048))
    A("s_cselect_b32 s37, 0, s37")
def g2_dma_a(A, slot):
    A("s_add_u32 m0, s35, %d" % g2_slot(slot))
    A("s_nop 0")
    for i in range(4):
        A("buffer_load_dwordx4 v19, s[12:15], s36 offen offset:%d lds" % (i * 1024))
    A("s_add_u32 s36, s36, 0x40000")
    A("s_cmp_ge_u32 s36, s45")
    A("s_cselect_b32 s34, s45, 0")
    A("s_sub_u32 s36, s36, s34")
def g2_loader_setup(A):
    A("s_sub_u32 s35, s28, 4")
    A("s_lshr_b32 s36, s35, 1")
    A("s_lshl_b32 s36, s36, 17")
    A("s_lshl_b32 s34, s29, 14")
    A("s_add_u32 s36, s36, s34")
    A("s_and_b32 s34, s30, 4")
    A("s_lshl_b32 s34, s34, 11")
    A("s_add_u32 s36, s36, s34")
    A("s_and_b32 s34, s35, 1")
    A("s_lshl_b32 s34, s34, 12")
    A("s_add_u32 s36, s36, s34")
    A("v_lshrrev_b32 v15, 3, v1")
    A("v_lshlrev_b32 v15, 11, v15")
    A("v_bfe_u32 v2, v1, 4, 2")
    A("v_lshlrev_b32 v2, 1, v2")
    A("v_and_b32 v7, 7, v1")
    A("v_xor_b32 v2, v2, v7")
    A("v_lshl_add_u32 v15, v2, 4, v15")
    A("s_lshl_b32 s34, s35, 15")
    A("s_and_b32 s37, s30, 8")
    A("s_lshl_b32 s37, s37, 7")
    A("s_add_u32 s34, s34, s37")
    A("s_and_b32 s37, s30, 3")
    A("s_lshl_b32 s37, s37, 8")
    A("s_add_u32 s34, s34, s37")
    A("v_add_u32 v14, s34, v15")
    A("v_add_u32 v15, %d, v14" % 128)
    A("v_add_u32 v16, %d, v14" % (16384 - 2048))
    A("v_add_u32 v17, %d, v14" % (16384 + 128 - 2048))
    A("s_lshr_b32 s34, s30, 2")
    A("s_mul_i32 s34, s34, 14")
    A("s_mul_i32 s37, s31, %d" % G2_SP)
    A("s_add_u32 s37, s37, s34")
    A("s_cmp_ge_u32 s37, 56")
    A("s_cselect_b32 s34, 56, 0")
    A("s_sub_u32 s37, s37, s34")
    A("s_add_u32 s47, s36, 0x%x" % (112 * 131072))
    A("s_lshl_b32 s34, s37, 18")
    A("s_add_u32 s36, s36, s34")
    A("s_lshl_b32 s37, s37, 17")
    A("s_lshl_b32 s35, s35, 12")
    srd(A, 8, 90, 3584 * 2048)
    for sl in range(G2R):
        g2_dma_w(A, sl)

def gen_g2f(A):
    R, KS, ST = G2R, 2, G2ST
    SP, SQ = G2_SP, 72 - G2_SP
    assert SP % 4 == 0 and SP <= 48
    NS = len(STL) + 2
    A.label("L_g2_com")
    st(A, "k1e")
    A("v_mov_b32 v21, 0")
    A("s_cmp_eq_u32 s31, 0")
    A("s_cselect_b32 s44, %d, %d" % (SP // R - 1, SQ // R - 1))
    A("s_cmp_ge_u32 s28, 4")
    A("s_cbranch_scc1 L_g2_loader")
    A("s_add_u32 s23, s27, 128")
    A("s_load_dwordx2 s[4:5], s[0:1], 0")
    A("s_load_dwordx4 s[24:27], s[0:1], 56")
    A("s_lshl_b32 s29, s29, 1")
    A("s_bfe_u32 s34, s30, 0x10002")
    A("s_add_u32 s29, s29, s34")
    A("s_lshr_b32 s34, s30, 3")
    A("s_lshl_b32 s34, s34, 2")
    A("s_and_b32 s30, s30, 3")
    A("s_add_u32 s30, s30, s34")
    A("v_mov_b32 v3, v19")
    A("s_and_b32 s32, s28, 1")
    A("s_lshr_b32 s33, s28, 1")
    A("s_lshl_b32 s34, s32, 12")
    A("v_add_u32 v8, s34, v3")
    A("v_add_u32 v9, 0x10000, v8")
    A("v_lshrrev_b32 v6, 5, v1")
    A("v_lshlrev_b32 v6, 11, v6")
    A("v_bfe_u32 v7, v1, 2, 3")
    A("v_lshl_add_u32 v6, v7, 7, v6")
    A("v_bfe_u32 v7, v1, 3, 2")
    A("v_lshl_add_u32 v6, v7, 5, v6")
    A("v_and_b32 v7, 3, v1")
    A("v_lshl_add_u32 v6, v7, 3, v6")
    A("s_lshl_b32 s34, s33, 10")
    A("s_add_u32 s34, s34, 16384")
    A("v_add_u32 v10, s34, v6")
    for t in range(1, 4):
        A("v_xor_b32 %s, %d, v10" % (v(10 + t), 32 * t))
    for t in range(4):
        A("v_add_u32 %s, 0x10000, %s" % (v(14 + t), v(10 + t)))
    ACC, FR0, PT = 24, 88, 152
    A("v_and_b32 v19, 15, v1")
    A("v_lshlrev_b32 v19, 11, v19")
    A("v_lshrrev_b32 v7, 4, v1")
    A("v_lshlrev_b32 v7, 3, v7")
    A("s_lshl_b32 s38, s30, 8")
    A("s_lshl_b32 s39, s33, 7")
    A("s_add_u32 s38, s38, s39")
    A("s_lshl_b32 s39, s29, 18")
    A("s_lshl_b32 s47, s32, 17")
    A("s_add_u32 s39, s39, s47")
    A("s_add_u32 s39, s39, s38")
    A("s_lshl_b32 s48, s29, 3")
    A("s_add_u32 s48, s48, s30")
    A("s_lshl_b32 s48, s48, 2")
    A("s_add_u32 s48, s48, s28")
    A("s_lshl_b32 s49, s48, 5")
    A("s_add_u32 s49, s49, 0x%x" % (WS_FLAG - WS_PART))
    A("s_lshl_b32 s48, s48, 14")
    srd(A, 8, 6, WS_FLAG - WS_PART + 16384, WS_PART)
    def read_fn(slot, u, st_):
        hi, base = slot & 1, (slot >> 1) * ST
        xs = [["ds_read_b128 %s, %s offset:%d" % (v(g.xf(st_, mb), 4), v(8 + hi), base + u * 8192 + mb * 1024)] for mb in range(4)]
        ws = []
        for t in range(4):
            for j in range(2):
                ws.append(["ds_read_b64_tr_b16 %s, %s offset:%d" % (v(g.wf(st_, t) + 2 * j, 2), v(10 + 4 * hi + t), base + u * 8192 + j * 4096)])
        return xs[:1] + ws + xs[1:]
    g = Gemm(A, "g2", 4, 4, KS, R, 3 * R, ACC, FR0, read_fn, lambda sl: [], 0, cnt=44, rd_last=11)
    for i in range(64):
        A("v_mov_b32 %s, 0" % v(ACC + i))
    A("v_lshrrev_b32 v23, 4, v1")
    A("v_and_b32 v6, 1, v23")
    A("v_lshlrev_b32 v6, 5, v6")
    A("v_lshrrev_b32 v23, 1, v23")
    A("v_lshl_add_u32 v6, v23, 4, v6")
    A("v_add_u32 v6, v6, v19")
    g.period(-1, R - 1, True, False, None, first=True)
    st(A, "g0")
    A("s_lshl_b32 s50, s28, 1")
    A("s_add_u32 s50, s50, s31")
    A("s_cmp_lg_u32 s50, 1")
    A("s_cbranch_scc1 L_g2_loop")
    A("v_mov_b32 v22, 1")
    A("s_mov_b64 exec, 1")
    A("buffer_atomic_add v22, v21, s[52:55], s23 offen sc1")
    A("s_mov_b64 exec, -1")
    A.label("L_g2_loop")
    for p in range(R):
        g.period(p, p, True, False, None)
    A("s_sub_u32 s44, s44, 1")
    A("s_cmp_lg_u32 s44, 0")
    A("s_cbranch_scc1 L_g2_loop")
    A("s_cmp_lg_u32 s31, 0")
    A("s_cbranch_scc1 L_g2_poll")
    srd(A, 16, 4, 4 * MB_)
    srd(A, 40, 24, 2048)
    for t in range(4):
        A("buffer_load_dwordx2 %s, v7, s[40:43], s38 offen offset:%d" % (v(PT + 32 + 2 * t, 2), t * 32))
    for mb in range(4):
        A("s_add_u32 s47, s39, %d" % (mb * 32768))
        for h in range(2):
            A("buffer_load_dwordx4 %s, v6, s[16:19], s47 offen offset:%d" % (v(PT + 8 * mb + 4 * h, 4), h * 64))
    A("s_branch L_g2_nopoll")
    A.label("L_g2_poll")
    st(A, "gp0")
    A.label("L_g2_poll1")
    A("s_sleep 2")
    A("buffer_load_dword v22, v21, s[8:11], s49 offen sc1")
    A("s_waitcnt vmcnt(0)")
    A("v_readfirstlane_b32 s50, v22")
    A("s_cmp_eq_u32 s50, 0")
    A("s_cbranch_scc1 L_g2_poll1")
    st(A, "gp1")
    for q in range(4):
        A("s_add_u32 s47, s48, %d" % (q * 4096))
        for i in range(4):
            A("buffer_load_dwordx4 %s, v3, s[8:11], s47 offen offset:%d sc1" % (v(PT + 16 * q + 4 * i, 4), i * 1024))
    A.label("L_g2_nopoll")
    for p in range(R - 1):
        g.period(p, p, True, False, None)
    A("s_waitcnt lgkmcnt(0)")
    g.period(R - 1, R - 1, False, False, None, barrier=False)
    st(A, "g1")
    A("s_nop 7")
    A("s_cmp_lg_u32 s31, 0")
    A("s_cbranch_scc1 L_g2_fin")
    A("s_waitcnt vmcnt(0)")
    for t in range(4):
        b, bb = PT + 32 + 2 * t, PT + 40 + 4 * t
        A("v_lshlrev_b32 %s, 16, %s" % (v(bb), v(b)))
        A("v_and_b32 %s, 0xffff0000, %s" % (v(bb + 1), v(b)))
        A("v_lshlrev_b32 %s, 16, %s" % (v(bb + 2), v(b + 1)))
        A("v_and_b32 %s, 0xffff0000, %s" % (v(bb + 3), v(b + 1)))
    for d in range(PT, PT + 32, 4):
        A("v_permlane16_swap_b32 %s, %s" % (v(d), v(d + 2)))
        A("v_permlane16_swap_b32 %s, %s" % (v(d + 1), v(d + 3)))
    for mb in range(4):
        for t in range(4):
            c, x, bb, q = g.accr(mb, t), PT + 8 * mb + 2 * t, PT + 40 + 4 * t, PT + 56 + 4 * (t & 1)
            A("v_lshlrev_b32 %s, 16, %s" % (v(q), v(x)))
            A("v_and_b32 %s, 0xffff0000, %s" % (v(q + 1), v(x)))
            A("v_lshlrev_b32 %s, 16, %s" % (v(q + 2), v(x + 1)))
            A("v_and_b32 %s, 0xffff0000, %s" % (v(q + 3), v(x + 1)))
            for i in range(0, 4, 2):
                A("v_pk_add_f32 %s, %s, %s" % (v(q + i, 2), v(q + i, 2), v(bb + i, 2)))
            for i in range(0, 4, 2):
                A("v_pk_add_f32 %s, %s, %s" % (v(c + i, 2), v(c + i, 2), v(q + i, 2)))
        A("s_add_u32 s47, s48, %d" % (mb * 4096))
        for i in range(4):
            A("buffer_store_dwordx4 %s, v3, s[8:11], s47 offen offset:%d sc1" % (v(ACC + 16 * mb + 4 * i, 4), i * 1024))
    A("v_mov_b32 v22, 1")
    A("s_waitcnt vmcnt(0)")
    A("s_mov_b64 exec, 1")
    A("buffer_store_dword v22, v21, s[8:11], s49 offen sc1")
    A("s_mov_b64 exec, -1")
    stamp_out(A, 0, NS, 6, "s28")
    A("s_endpgm")
    A.label("L_g2_fin")
    srd(A, 16, 26, 4 * MB_)
    for mb in range(4):
        A("s_waitcnt vmcnt(%d)" % (12 - 4 * mb + 2 * mb))
        for i in range(0, 16, 2):
            A("v_pk_add_f32 %s, %s, %s" % (v(ACC + 16 * mb + i, 2), v(ACC + 16 * mb + i, 2), v(PT + 16 * mb + i, 2)))
        A("s_add_u32 s47, s39, %d" % (mb * 32768))
        for h in range(2):
            d = FR0 + 8 * mb + 4 * h
            for t in range(2):
                c = g.accr(mb, 2 * h + t)
                A("v_cvt_pk_bf16_f32 %s, %s, %s" % (v(d + 2 * t), v(c), v(c + 1)))
                A("v_cvt_pk_bf16_f32 %s, %s, %s" % (v(d + 2 * t + 1), v(c + 2), v(c + 3)))
            A("s_nop 1")
            A("v_permlane16_swap_b32 %s, %s" % (v(d), v(d + 2)))
            A("v_permlane16_swap_b32 %s, %s" % (v(d + 1), v(d + 3)))
            A("buffer_store_dwordx4 %s, v6, s[16:19], s47 offen offset:%d%s" % (v(d, 4), h * 64, OUTSC))
    stamp_out(A, 0, NS, 6, "s28")
    A("s_endpgm")
    A.label("L_g2_loader")
    A("s_add_u32 s38, s27, s26")
    A("s_add_u32 s39, s27, 128")
    A("s_cmp_eq_u32 s31, 0")
    A("s_cselect_b32 s38, s38, s27")
    A("s_cselect_b32 s39, s27, s39")
    A("s_cselect_b32 s41, 4, 16")
    A("s_cselect_b32 s46, 10, %d" % (52 - SP))
    A("s_mov_b32 s45, 0x%x" % (112 * 131072))
    A("s_branch L_g2_hchk")
    A.label("L_g2_hpoll")
    A("s_sleep %d" % SLP)
    A("buffer_load_dword v22, v21, s[52:55], s38 offen sc1")
    A("s_waitcnt vmcnt(0)")
    A.label("L_g2_hchk")
    A("v_readfirstlane_b32 s40, v22")
    A("s_cmp_lt_u32 s40, s41")
    A("s_cbranch_scc1 L_g2_hpoll")
    st(A, "g0")
    A("v_mov_b32 v22, 0")
    for sl in range(R):
        g2_dma_a(A, sl)
    A("s_waitcnt vmcnt(12)")
    A("s_barrier")
    outl = []
    def dma(slot):
        g2_dma_w(A, slot)
        g2_dma_a(A, slot)
        l1, l2, l3, l4 = (A.newlabel("g2o") for _ in range(4))
        A("s_sub_u32 s46, s46, 1")
        A("s_and_b32 s34, s46, 0xfffffffb")
        A("s_cbranch_scc0 %s" % l1)
        A.label(l2)
        outl.append((l1, l2, l3, l4))
    for p in range(R):
        A("s_waitcnt vmcnt(%d)" % (8, 12, 16, 16)[p])
        A("s_barrier")
        dma(p)
    A("s_sub_u32 s44, s44, 1")
    A.label("L_g2_lloop")
    for p in range(R):
        A("s_waitcnt vmcnt(%d)" % (8 * (R - 2)))
        A("s_barrier")
        dma(p)
    A("s_sub_u32 s44, s44, 1")
    A("s_cmp_lg_u32 s44, 0")
    A("s_cbranch_scc1 L_g2_lloop")
    for p in range(R - 1):
        A("s_waitcnt vmcnt(%d)" % (8 * (R - 2 - p)))
        A("s_barrier")
    for nm in ("g1",): st(A, nm)
    stamp_out(A, 0, NS, 6, "s28")
    A("s_endpgm")
    for l1, l2, l3, l4 in outl:
        A.label(l1)
        A("s_cmp_eq_u32 s46, 0")
        A("s_cbranch_scc1 %s" % l3)
        A("buffer_load_dword v22, v21, s[52:55], s39 offen sc1")
        A("s_branch %s" % l2)
        A.label(l4)
        A("s_sleep %d" % SLP)
        A("buffer_load_dword v22, v21, s[52:55], s39 offen sc1")
        A("s_waitcnt vmcnt(0)")
        A.label(l3)
        A("v_readfirstlane_b32 s40, v22")
        A("s_cmp_lt_u32 s40, 16")
        A("s_cbranch_scc1 %s" % l4)
        st(A, "gp0")
        A("s_cmp_eq_u32 s31, 0")
        A("s_cbranch_scc1 %s" % l2)
        srd(A, 8, 92, 1024 * 2048)
        A("s_mov_b32 s37, 0")
        A("s_mov_b32 s36, s47")
        A("s_mov_b32 s45, -1")
        A("s_branch %s" % l2)

def gen_k1(A):
    name = NAME + "_kernel"
    kernel_begin(A, name)
    A("s_cmp_ge_u32 s2, 256")
    A("s_cbranch_scc1 L_k1_done")
    st(A, "start")
    A("s_load_dwordx4 s[20:23], s[0:1], 0")
    A("s_load_dwordx4 s[24:27], s[0:1], 32")
    A("s_load_dwordx4 s[4:7], s[0:1], 72")
    A("s_load_dwordx2 s[90:91], s[0:1], 48")
    A("s_load_dwordx2 s[92:93], s[0:1], 16")
    A("v_and_b32 v1, 63, v0")
    A("v_lshrrev_b32 v2, 6, v0")
    A("v_lshlrev_b32 v19, 4, v1")
    A("v_readfirstlane_b32 s28, v2")
    A("s_and_b32 s29, s2, 1")
    A("s_lshl_b32 s29, s29, 2")
    A("s_bfe_u32 s30, s2, 0x20003")
    A("s_add_u32 s29, s29, s30")
    A("s_bfe_u32 s30, s2, 0x20001")
    A("s_lshl_b32 s30, s30, 2")
    A("s_lshr_b32 s31, s2, 6")
    A("s_add_u32 s30, s30, s31")
    A("s_and_b32 s32, s28, 3")
    A("s_lshr_b32 s33, s28, 2")
    A("s_lshl_b32 s31, s2, 3")
    A("s_add_u32 s31, s31, s28")
    A("s_lshl_b32 s34, s31, 11")
    A("s_waitcnt lgkmcnt(0)")
    st(A, "karg")
    srd(A, 8, 20, 4 * MB_)
    TS = 160
    A("buffer_load_dwordx4 %s, v19, s[8:11], s34 offen" % v(TS, 4))
    A("buffer_load_dwordx4 %s, v19, s[8:11], s34 offen offset:1024" % v(TS + 4, 4))
    A("v_lshrrev_b32 v3, 3, v1")
    A("v_lshlrev_b32 v3, 11, v3")
    A("v_and_b32 v7, 7, v1")
    A("v_lshrrev_b32 v2, 4, v1")
    A("v_xor_b32 v7, v7, v2")
    A("v_lshl_add_u32 v3, v7, 4, v3")
    A("v_xor_b32 v4, 64, v3")
    A("v_add_u32 v4, %d, v4" % (8 * 2048 - 1024))
    A("s_lshl_b32 s36, s29, 19")
    A("s_lshl_b32 s34, s28, 16")
    A("s_add_u32 s36, s36, s34")
    A("s_lshl_b32 s46, s28, 12")
    A("s_mov_b32 s37, 0")
    A("s_lshl_b32 s35, s28, 11")
    A("s_add_u32 s35, s35, %d" % K1_WR)
    w_chunk(A, 5, 1, 7)
    A("v_lshrrev_b32 v6, 4, v1")
    A("v_lshlrev_b32 v6, 3, v6")
    A("v_bfe_u32 v7, v1, 2, 2")
    A("v_add_u32 v6, v6, v7")
    A("s_bitcmp1_b32 s2, 5")
    A("s_cbranch_scc1 L_k1_w1")
    ACC = 20
    CSO = 65536
    for typ in ("qkv", "w1"):
        NB = 6 if typ == "qkv" else 7
        FR0 = ACC + 16 * NB
        EX = FR0 + 8 * (4 + NB)
        rowb = 6144 if typ == "qkv" else 7168
        SL, SD, CR = 224, 220, FR0
        if typ == "w1":
            A.label("L_k1_w1")
        if typ == "qkv":
            srd(A, 12, 22, 1024 * 6144)
            A("s_cmp_ge_u32 s28, 3")
            A("s_cselect_b32 s38, 1, 0")
            A("s_mul_i32 s39, s38, 3")
            A("s_sub_u32 s39, s28, s39")
            A("s_lshl_b32 s39, s39, 11")
            A("s_lshl_b32 s40, s30, 1")
            A("s_add_u32 s40, s40, s38")
            A("s_lshl_b32 s40, s40, 6")
            A("s_add_u32 s39, s39, s40")
        else:
            srd(A, 12, 24, 1024 * 7168)
            A("s_mul_i32 s39, s30, 448")
            A("s_lshl_b32 s40, s28, 6")
            A("s_add_u32 s39, s39, s40")
        A("s_movk_i32 s40, %d" % rowb)
        A("v_mul_lo_u32 v6, v6, s40")
        A("v_add3_u32 v5, v5, v6, s39")
        A("v_add_u32 v6, %d, v5" % (4 * rowb - 1024))
        A("s_movk_i32 s40, 7168")
        A("s_movk_i32 s49, 0x3f80")
        g = Gemm(A, "k1", 4, NB, 1, 4, 32, ACC, FR0, None, None, 0, swap_fn=(lambda nb: nb >= 4) if typ == "qkv" else None)
        def reads(stage_par, wslot, st, NB=NB, g=g):
            xs = [["ds_read_b128 %s, %s offset:%d" % (v(g.xf(st, mb), 4), v(8 + 2 * (mb >> 1) + stage_par), (mb & 1) * 2048)] for mb in range(4)]
            ws = []
            for t in range(NB):
                b, off = (16 + (t & 1), (t >> 1) * 2048) if t < 6 else (0, 0)
                for j in range(2):
                    ws.append(["ds_read_b64_tr_b16 %s, %s offset:%d" % (v(g.wf(st, t) + 2 * j, 2), v(b), wslot * K1_WST + off + j * 1024)])
            return xs[:1] + ws + xs[1:]
        for role in (0, 1):
            ops = []
            def a_half(h, tag):
                ops.extend([tag, tag])
                if h == 0:
                    return [["s_mov_b32 m0, s46", "s_nop 0", "buffer_load_dwordx4 v3, s[8:11], s36 offen lds"],
                            ["buffer_load_dwordx4 v4, s[8:11], s36 offen offset:1024 lds", "s_add_u32 s34, s36, 32768"]]
                return [["s_add_u32 m0, s46, 2048", "s_add_u32 s36, s36, 128", "buffer_load_dwordx4 v3, s[8:11], s34 offen lds"],
                        ["buffer_load_dwordx4 v4, s[8:11], s34 offen offset:1024 lds", "s_add_u32 s46, s46, 32768",
                         "s_cmp_ge_u32 s46, 98304", "s_cselect_b32 s38, 98304, 0", "s_sub_u32 s46, s46, s38"]]
            def w_st(slot, tag, role=role, rowb=rowb):
                if role: return []
                ops.extend([tag, tag])
                return [["s_add_u32 m0, s35, %d" % (slot * K1_WST), "s_nop 0", "buffer_load_dwordx4 v5, s[12:15], s37 offen lds"],
                        ["buffer_load_dwordx4 v6, s[12:15], s37 offen offset:1024 lds", "s_add_u32 s37, s37, %d" % (32 * rowb)]]
            def emit(fs):
                for f in fs:
                    for i in f: A(i)
            def younger(tags):
                last = max([i for i, t in enumerate(ops) if t in tags] + [-1])
                return len(ops) - 1 - last
            if role == 0:
                A("s_cmp_ge_u32 s28, %d" % NB)
                A("s_cbranch_scc1 L_k1_%s_role1" % typ)
            else:
                A.label("L_k1_%s_role1" % typ)
            ops.extend(["row", "row"])
            def item(t):
                if t[0] == "W": return w_st(int(t[1:]) & 3, t)
                if t[0] == "A": return a_half(int(t[-1]), t[:-2])
                i = int(t[1:])
                ops.append("pf")
                return [["buffer_load_dwordx4 %s, v18, s[16:19], s41 offen" % v(SL + 4 * i, 4), "s_add_u32 s41, s41, s42"]]
            def items(key):
                return [f for t in SCHED.get(key, "").split() for f in item(t)]
            emit(items("pre"))
            A("s_cmp_lt_u32 s2, 96")
            A("s_cselect_b32 s16, s22, s24")
            A("s_cselect_b32 s17, s23, s25")
            A("s_cselect_b32 s38, 6144, s40")
            A("s_cselect_b32 s39, 0, 96")
            A("s_lshl_b32 s18, s38, 10")
            A("s_cmp_ge_u32 s2, 208")
            A("s_cselect_b32 s18, 0, s18")
            A("s_mov_b32 s19, 0x00020000")
            A("s_sub_u32 s39, s2, s39")
            A("s_and_b32 s41, s39, 1")
            A("s_lshl_b32 s41, s41, 3")
            A("s_add_u32 s41, s41, s28")
            A("s_lshl_b32 s41, s41, 6")
            A("s_mul_i32 s41, s41, s38")
            A("s_lshr_b32 s39, s39, 1")
            A("s_lshl_b32 s39, s39, 7")
            A("s_add_u32 s41, s41, s39")
            A("v_lshrrev_b32 v18, 3, v1")
            A("v_mul_lo_u32 v18, v18, s38")
            A("v_and_b32 v2, 7, v1")
            A("v_lshl_add_u32 v18, v2, 4, v18")
            A("s_lshl_b32 s42, s38, 3")
            emit(items("pre2"))
            A("v_and_b32 v2, 15, v1")
            A("v_and_b32 v7, 1, v1")
            A("v_lshlrev_b32 v7, 4, v7")
            A("v_lshlrev_b32 v7, v7, s49")
            A("v_lshrrev_b32 v2, 1, v2")
            for i in range(4):
                A("v_cmp_eq_u32 vcc, %d, v2" % i)
                A("v_cndmask_b32 %s, 0, v7, vcc" % v(12 + i))
            A("v_and_b32 v2, 15, v1")
            A("v_lshlrev_b32 v8, 7, v2")
            A("v_lshrrev_b32 v2, 1, v2")
            A("v_lshrrev_b32 v7, 4, v1")
            A("v_xor_b32 v2, v2, v7")
            A("v_lshl_add_u32 v2, v2, 4, v8")
            A("s_lshl_b32 s38, s32, 12")
            A("s_sub_u32 s39, %d, s38" % (7 * 4096))
            A("v_add_u32 v8, s38, v2")
            A("v_add_u32 v10, s39, v2")
            A("v_xor_b32 v9, 64, v8")
            A("v_xor_b32 v11, 64, v10")
            tr_base(A, 0, 1, 7)
            A("s_mul_i32 s40, s33, %d" % ((3 if typ == "qkv" else 4) * 2048))
            A("s_add_u32 s40, s40, %d" % K1_WR)
            A("v_add_u32 v16, s40, v0")
            A("v_xor_b32 v17, 32, v16")
            if typ == "w1":
                A("v_and_b32 v0, 0xffffffe7, v0")
                A("v_and_b32 v7, 1, v1")
                A("v_lshlrev_b32 v7, 5, v7")
                A("v_xor_b32 v0, v0, v7")
                A("v_and_b32 v7, 2, v1")
                A("v_lshl_add_u32 v0, v7, 2, v0")
                A("s_lshl_b32 s40, s33, 4")
                A("s_add_u32 s40, s40, %d" % (K1_WR + 3 * 2048))
                A("v_add_u32 v0, s40, v0")
            for i in range(4):
                A("v_mov_b32 %s, 0" % v(20 + i))
            A("s_mov_b32 s47, 0")
            A("s_mov_b32 s50, 32768")
            A("s_mov_b32 s51, 32768")
            srd(A, 52, 6, 131072, WS_SYNC)
            srd(A, 56, 4, 256)
            st(A, "issued")
            A("s_waitcnt vmcnt(%d)" % younger(["row"]))
            st(A, "row")
            k1_stats(A, TS)
            st(A, "stats")
            for i in range(1, 4):
                A("v_cmp_eq_u32 vcc, %d, v1" % i)
                A("v_cndmask_b32 %s, %s, %s, vcc" % (v(TS), v(TS), v(TS + i)))
            A("v_lshlrev_b32 v2, 13, v1")
            A("s_lshl_b32 s38, s31, 2")
            A("s_add_u32 s39, s38, 32768")
            A("s_lshl_b32 s38, s31, 4")
            A("s_mov_b64 exec, 15")
            A("buffer_store_dword %s, v2, s[52:55], s39 offen sc1" % v(TS))
            A("s_mov_b64 exec, 1")
            A("buffer_store_dwordx4 v[20:23], v20, s[52:55], s38 offen sc1")
            A("s_mov_b64 exec, -1")
            ops.extend(["st"] * 2)
            emit(items("post"))
            def period(p, vm, do_a, do_w, rd=None, extra=None, g=g, NB=NB):
                n = 4 * NB
                A("s_waitcnt vmcnt(%d) lgkmcnt(0)" % vm)
                A("s_barrier")
                if extra: extra()
                if rd is None:
                    rd = reads((p + 1) & 1, (p + 1) & 3, (p + 1) & 1)
                if p < 0:
                    emit(rd + items(-1))
                    return
                if do_a == "sched":
                    dm = items(p)
                else:
                    dm = (w_st(p & 3, "W%d" % (p + 4)) if do_w else []) + (a_half(1 - (p & 1), "A%d" % ((p + 5) // 2)) if do_a else [])
                if p & 1 == 0:
                    upd = ["v_add_u32 v8, s50, v8", "v_add_u32 v10, s50, v10"]
                else:
                    upd = ["v_add_u32 v9, s50, v9", "v_add_u32 v11, s50, v11", "s_add_u32 s47, s47, s50",
                           "s_cmp_eq_u32 s47, 65536", "s_cselect_b32 s50, 0xffff0000, s51"]
                slots = [[] for _ in range(n)]
                for i, f in enumerate(rd):
                    slots[(i * (n - 4)) // len(rd)].append(f)
                for i, f in enumerate(dm):
                    slots[min(((2 * i + 1) * n) // (2 * len(dm)), n - 1)].append(f)
                slots[n - 2].append(upd)
                for i, m in enumerate(g.mfmas(p & 1)):
                    A(m if p else m[:m.rindex(",")] + ", 0")
                    for f in slots[i]:
                        for ins in f: A(ins)
            L = 2 if role else 4
            period(-1, younger(["A0", "W0"]), False, False)
            st(A, "p0")
            def cs_mfma():
                for i in range(8):
                    A("v_mfma_f32_16x16x32_bf16 %s, v[12:15], %s, %s" % (v(SD, 4), v(SL + 4 * i, 4), v(SD, 4) if i else "0"))
                A("s_lshl_b32 s38, s28, 10")
                A("s_add_u32 s38, s38, %d" % K1_SP)
                A("v_add_u32 v2, s38, v19")
            def cs_red():
                if True:
                    lab = A.newlabel("csr")
                    A("s_cmp_lg_u32 s28, 7")
                    A("s_cbranch_scc1 %s" % lab)
                    A("v_lshrrev_b32 v2, 3, v1")
                    A("v_lshlrev_b32 v2, 4, v2")
                    A("v_bfe_u32 v7, v1, 2, 1")
                    A("v_lshl_add_u32 v2, v7, 8, v2")
                    A("v_and_b32 v7, 3, v1")
                    A("v_lshl_add_u32 v2, v7, 2, v2")
                    A("v_add_u32 v2, %d, v2" % K1_SP)
                    for i in range(16):
                        A("ds_read_b32 %s, v2 offset:%d" % (v(SL + i), (i >> 1) * 1024 + (i & 1) * 128))
                    A("s_lshr_b32 s38, s2, 1")
                    A("s_lshl_b32 s38, s38, 8")
                    A("s_and_b32 s39, s2, 1")
                    A("s_mul_i32 s39, s39, 32768")
                    A("s_add_u32 s38, s38, s39")
                    A("s_add_u32 s38, s38, %d" % CSO)
                    A("v_lshlrev_b32 v2, 2, v1")
                    A("s_waitcnt lgkmcnt(0)")
                    for st in (8, 4, 2, 1):
                        for i in range(st):
                            A("v_add_f32 %s, %s, %s" % (v(SL + i), v(SL + i), v(SL + i + st)))
                    A("buffer_store_dword %s, v2, s[52:55], s38 offen sc1" % v(SL))
                    A.label(lab)
            for p in range(8):
                need = ["W%d" % (p + 1), "A%d" % ((p + 1) // 2)] + (["pf", "st"] if p == 6 else [])
                period(p, younger(need), "sched", True, extra=cs_mfma if p == 6 else cs_red if (p == 7 and role) else None)
                if p == 6: A("ds_write_b128 v2, %s" % v(SD, 4))
                if p == 3: st(A, "p4")
            assert younger(["W9", "A4"]) >= 2 * L or role
            lab = A.newlabel("k1loop")
            A("s_mov_b32 s44, 5")
            A.label(lab)
            for p in range(4, 8):
                period(p, 2 * L, True, True)
            if role == 1:
                l2 = A.newlabel("sig")
                A("s_lshl_b32 s38, s44, 3")
                A("s_add_u32 s38, s38, s28")
                A("s_cmp_lg_u32 s38, %d" % (5 * 8 + 7))
                A("s_cbranch_scc1 %s" % l2)
                A("v_mov_b32 v12, 1")
                A("v_mov_b32 v13, 0")
                A("s_mov_b64 exec, 1")
                A("buffer_atomic_add v12, v13, s[56:59], 0 offen sc1")
                A("s_mov_b64 exec, -1")
                A.label(l2)
            A("s_sub_u32 s44, s44, 1")
            A("s_cmp_lg_u32 s44, 0")
            A("s_cbranch_scc1 %s" % lab)
            def poll0():
                A("v_mov_b32 v3, 0")
                A("buffer_load_dword v4, v3, s[56:59], 0 offen sc1")
            def fetch(typ=typ):
                l1, l2, l3 = A.newlabel("pa"), A.newlabel("pb"), A.newlabel("pc")
                A("s_cmp_lg_u32 s28, 7")
                A("s_cbranch_scc1 %s" % l3)
                A.label(l1)
                A("v_readfirstlane_b32 s38, v4")
                A("s_cmp_ge_u32 s38, 256")
                A("s_cbranch_scc1 %s" % l2)
                A("buffer_load_dword v4, v3, s[56:59], 0 offen sc1")
                A("s_waitcnt vmcnt(0)")
                A("s_branch %s" % l1)
                A.label(l2)
                A("s_lshl_b32 s38, s29, 10")
                A("s_add_u32 s38, s38, %d" % (32768 if typ == "qkv" else 49152))
                A("s_add_u32 s41, s38, %d" % (8192 - 1024))
                A("s_mov_b32 m0, %d" % K1_SP)
                if typ == "qkv":
                    A("v_lshrrev_b32 v2, 4, v1")
                    A("v_and_b32 v7, 0xf0, v19")
                    A("v_lshl_add_u32 v2, v2, 12, v7")
                    A("s_lshl_b32 s39, s30, 8")
                    A("s_add_u32 s39, s39, %d" % (CSO - 2048))
                else:
                    A("v_mov_b32 v2, v19")
                    A("s_mul_i32 s39, s30, 896")
                    A("s_add_u32 s39, s39, %d" % (CSO - 2048 + 3072 * 4))
                A("s_add_u32 s40, s39, %d" % (32768 - 1024))
                A("buffer_load_dwordx4 v19, s[52:55], s38 offen sc1 lds")
                A("buffer_load_dwordx4 v19, s[52:55], s41 offen offset:1024 sc1 lds")
                A("buffer_load_dwordx4 v2, s[52:55], s39 offen offset:2048 sc1 lds")
                A("buffer_load_dwordx4 v2, s[52:55], s40 offen offset:3072 sc1 lds")
                if typ == "w1":
                    srd(A, 16, 26, 3584 * 2)
                    A("s_mov_b32 m0, %d" % (K1_SP + 4096))
                    A("s_mul_i32 s39, s30, 448")
                    A("buffer_load_dwordx4 v19, s[16:19], s39 offen lds")
                A.label(l3)
            def par_addr(typ=typ):
                A("v_lshlrev_b32 v7, 6, v1")
                A("s_lshl_b32 s38, s31, 12")
                srd(A, 16, 90, 3584 * 2048)
                A("buffer_load_dword v3, v7, s[16:19], s38 offen")
                srd(A, 16, 92, 1024 * 2048)
                A("buffer_load_dword v4, v7, s[16:19], s38 offen")
                A("s_lshl_b32 s38, s32, 7")
                A("s_sub_u32 s39, %d, s38" % (K1_SP + 7 * 128))
                A("s_add_u32 s38, s38, %d" % K1_SP)
                A("v_and_b32 v2, 15, v1")
                A("v_and_b32 v7, 48, v1")
                A("v_lshl_add_u32 v12, v2, 2, s38")
                A("v_lshl_add_u32 v13, v2, 2, s39")
                if typ == "qkv":
                    A("v_add_u32 v14, s38, v7")
                    A("v_add_u32 v15, s39, v7")
                    A("s_lshl_b32 s38, s33, 7")
                    A("s_add_u32 s38, s38, %d" % (K1_SP + 2048))
                    A("v_add_u32 v5, s38, v7")
                    A("v_lshl_add_u32 v6, v2, 2, s38")
                else:
                    A("s_lshl_b32 s38, s33, 9")
                    A("s_add_u32 s38, s38, %d" % (K1_SP + 2048))
                    A("v_add_u32 v5, s38, v7")
                    A("v_lshrrev_b32 v7, 1, v7")
                    A("s_lshl_b32 s38, s33, 8")
                    A("s_add_u32 s38, s38, %d" % (K1_SP + 4096))
                    A("v_add_u32 v14, s38, v7")
                    A("v_and_b32 v2, 16, v1")
                    A("v_lshrrev_b32 v7, 3, v1")
                    A("v_and_b32 v7, 4, v7")
                    A("v_add_u32 v2, v2, v7")
                    A("s_lshl_b32 s38, s33, 5")
                    A("s_add_u32 s38, s38, %d" % (K1_SP + 2048 + 384))
                    A("v_lshl_add_u32 v6, v2, 2, s38")
                    A("s_lshl_b32 s38, s33, 4")
                    A("s_add_u32 s38, s38, %d" % (K1_SP + 4096 + 192))
                    A("v_lshl_add_u32 v15, v2, 1, s38")
            pr = [["ds_read_b32 %s, %s offset:%d" % (v(EX + 2 * mb + h), v(12 + (mb >> 1)), (mb & 1) * 64 + h * 1024)] for mb in range(4) for h in range(2)]
            if typ == "qkv":
                C1 = CR + 18
                for h, c in enumerate((CR, C1)):
                    pr += [["ds_read_b128 %s, v5 offset:%d" % (v(c + 4 * t, 4), h * 1024 + (t >> 1) * 256 + (t & 1) * 64)] for t in range(4)]
                    pr += [["ds_read_b32 %s, v6 offset:%d" % (v(c + 16 + t), h * 1024 + 512 + t * 64)] for t in range(2)]
                pr += [["ds_read_b128 %s, %s offset:%d" % (v(EX + 8 + 8 * mb + 4 * h, 4), v(14 + (mb >> 1)), (mb & 1) * 64 + h * 1024)]
                       for mb in range(4) for h in range(2)]
            else:
                C1 = EX + 8
                for h, c in enumerate((CR, C1)):
                    pr += [["ds_read_b128 %s, %s offset:%d" % (v(c + 4 * t, 4), "v5" if t < 6 else "v6", h * 1024 + (t * 64 if t < 6 else 0))] for t in range(7)]
                pr += [["ds_read_b64 %s, %s offset:%d" % (v(CR + 28 + 2 * t, 2), "v14" if t < 6 else "v15", t * 32 if t < 6 else 0)] for t in range(7)]
            period(28, 2 * L, False, False, extra=poll0 if role else None)
            period(29, 0 if role else L, False, False, extra=fetch if role else None)
            period(30, 63 if role else 0, False, False, extra=par_addr)
            period(31, 2, False, False, rd=pr)
            if role == 0:
                A("s_branch L_k1_%s_epi" % typ)
        A.label("L_k1_%s_epi" % typ)
        st(A, "loop")
        A("s_waitcnt lgkmcnt(0)")
        for i in range(0, 18 if typ == "qkv" else 28, 2):
            A("v_pk_add_f32 %s, %s, %s" % (v(CR + i, 2), v(CR + i, 2), v(C1 + i, 2)))
        srd(A, 12, 6, ACT_BYTES, WS_ACT)
        A("s_lshl_b32 s39, s29, 14")
        A("s_lshl_b32 s40, s32, 11")
        A("s_sub_u32 s41, %d, s40" % (7 * 2048))
        A("s_add_u32 s40, s40, s39")
        A("s_add_u32 s41, s41, s39")
        if typ == "qkv":
            T = 152
            def norm(mb, nb):
                c = g.accr(mb, nb)
                for i in (0, 2):
                    if nb < 4:
                        A("v_pk_mul_f32 %s, %s, %s op_sel:[0,1] op_sel_hi:[1,1]" % (v(T + i, 2), v(CR + 4 * nb + i, 2), v(EX + 2 * mb, 2)))
                    else:
                        A("v_pk_mul_f32 %s, %s, %s op_sel:[0,%d] op_sel_hi:[1,%d]" % (v(T + i, 2), v(EX + 12 + 8 * mb + i, 2), v(CR + 16, 2), nb - 4, nb - 4))
                for i in (0, 2):
                    if nb < 4:
                        A("v_pk_fma_f32 %s, %s, %s, %s op_sel_hi:[1,0,1]" % (v(c + i, 2), v(c + i, 2), v(EX + 2 * mb, 2), v(T + i, 2)))
                    else:
                        A("v_pk_fma_f32 %s, %s, %s, %s" % (v(c + i, 2), v(c + i, 2), v(EX + 8 + 8 * mb + i, 2), v(T + i, 2)))
            def pack(d, c0, c1):
                for h, c in enumerate((c0, c1)):
                    A("v_cvt_pk_bf16_f32 %s, %s, %s" % (v(d + 2 * h), v(c), v(c + 1)))
                    A("v_cvt_pk_bf16_f32 %s, %s, %s" % (v(d + 2 * h + 1), v(c + 2), v(c + 3)))
            srd(A, 16, 6, 8 * MB_, WS_KV)
            A("s_lshl_b32 s34, s29, 4")
            A("s_add_u32 s34, s34, s30")
            A("s_lshl_b32 s35, s34, 16")
            A("s_lshl_b32 s38, s33, 15")
            A("s_add_u32 s38, s38, s35")
            A("s_lshl_b32 s39, s32, 12")
            A("s_sub_u32 s43, %d, s39" % (7 * 4096))
            A("s_add_u32 s42, s38, s39")
            A("s_add_u32 s38, s38, s43")
            A("s_lshl_b32 s36, s33, 16")
            A("s_add_u32 s39, s39, s36")
            A("s_add_u32 s43, s43, s36")
            A("v_add_u32 v12, s43, v19")
            A("v_add_u32 v13, s39, v19")
            for grp in range(2):
                for k in range(4):
                    d = T + 4 + 4 * (grp * 4 + k)
                    if k < 2:
                        mb = 2 * grp + k
                        norm(mb, 2); norm(mb, 3)
                        pack(d, g.accr(mb, 2), g.accr(mb, 3))
                    else:
                        norm(2 * grp, 2 + k); norm(2 * grp + 1, 2 + k)
                        pack(d, g.accr(2 * grp, 2 + k), g.accr(2 * grp + 1, 2 + k))
                    A("buffer_store_dwordx4 %s, v19, s[16:19], %s offen offset:%d sc1" % (v(d, 4), "s38" if grp else "s42", k * 1024))
                    A("ds_write_b128 %s, %s offset:%d" % (v(12 + grp), v(d, 4), k * 1024))
            QR, OA, MA = 192, 208, 14
            for mb in range(4):
                norm(mb, 0); norm(mb, 1)
            for mb in range(4):
                pack(QR + 4 * mb, g.accr(mb, 0), g.accr(mb, 1))
            A("s_waitcnt lgkmcnt(0)")
            A("s_barrier")
            st(A, "epi")
            A("v_and_b32 v2, 15, v1")
            A("v_lshrrev_b32 v7, 4, v1")
            A("v_lshlrev_b32 v7, 2, v7")
            A("s_mov_b64 s[50:51], s[40:41]")
            for r in range(4):
                A("v_add_u32 v8, %d, v7" % r)
                A("v_cmp_lt_u32 %s, v2, v8" % s(36 + 2 * r, 2))
            A("s_mov_b64 s[44:45], -1")
            A("s_mov_b64 s[46:47], 0")
            A("v_mov_b32 v7, 0xff800000")
            for i in range(4):
                A("v_mov_b32 %s, 0x3f803f80" % v(188 + i))
                A("v_mov_b32 %s, v7" % v(MA + i))
            for i in range(48):
                A("v_mov_b32 %s, 0" % v(OA + i))
            A("s_mov_b32 s48, %s" % f32((32 ** -0.5) * math.log2(math.e)))
            A("s_add_u32 s20, s32, 1")
            A("s_sub_u32 s21, 8, s32")
            A("s_mov_b32 s22, 0")
            A("s_lshl_b32 s27, s29, 11")
            A("s_add_u32 s27, s27, %d" % (16384 + 64))
            A("s_lshl_b32 s23, s34, 7")
            A("s_add_u32 s23, s23, 16384")
            A("v_mov_b32 v18, 0")
            A("v_mov_b32 v20, 1")
            A("s_waitcnt vmcnt(0)")
            A("s_mov_b64 exec, 1")
            A("buffer_atomic_add v20, v18, s[52:55], s23 offen sc1")
            A("s_mov_b64 exec, -1")
            st(A, "at0")
            A.label("L_k1_part")
            attn_body(A, "atB", QR + 8, OA + 24, MA + 2, 13, 21)
            A("s_cmp_lg_u32 s22, 0")
            A("s_cbranch_scc1 L_k1_nofetch")
            A("s_cmp_eq_u32 s29, 0")
            A("s_cbranch_scc1 L_k1_nofetch")
            st(A, "at1")
            A("s_sub_u32 s23, s23, 2048")
            A.label("L_k1_kvpoll")
            A("buffer_load_dword v20, v18, s[52:55], s23 offen sc1")
            A("s_waitcnt vmcnt(0)")
            A("v_readfirstlane_b32 s24, v20")
            A("s_cmp_lt_u32 s24, 8")
            A("s_cbranch_scc1 L_k1_kvpoll")
            st(A, "at2")
            A("s_lshl_b32 s24, s28, 13")
            A("s_add_u32 s25, s35, s24")
            A("s_sub_u32 s25, s25, 0x100000")
            A("s_lshl_b32 s26, s33, 15")
            A("s_add_u32 s24, s24, s26")
            for h in range(2):
                A("s_add_u32 m0, s24, %d" % (32768 + h * 4096))
                A("s_add_u32 s26, s25, %d" % (h * 4096))
                for i in range(4):
                    A("buffer_load_dwordx4 v19, s[16:19], s26 offen offset:%d sc1 lds" % (i * 1024))
            A.label("L_k1_nofetch")
            A("buffer_load_dword v22, v18, s[52:55], s27 offen sc1")
            attn_body(A, "atA", QR, OA, MA, 12, 20)
            A("s_cmp_lg_u32 s22, 0")
            A("s_cbranch_scc1 L_k1_atdone")
            A("s_cmp_eq_u32 s29, 0")
            A("s_cbranch_scc1 L_k1_atdone")
            st(A, "at3")
            A("s_mov_b32 s22, 1")
            for r in range(6):
                A("s_not_b64 %s, %s" % (s(36 + 2 * r, 2), s(36 + 2 * r, 2)))
            A("s_mov_b32 s24, s20")
            A("s_mov_b32 s20, s21")
            A("s_mov_b32 s21, s24")
            A("v_add_u32 v8, 32768, v12")
            A("v_add_u32 v12, 32768, v13")
            A("v_mov_b32 v13, v8")
            A("s_waitcnt vmcnt(0)")
            A("s_barrier")
            st(A, "at4")
            A("s_branch L_k1_part")
            A.label("L_k1_atdone")
            A("s_lshl_b32 s24, s30, 1")
            A("s_add_u32 s24, s24, s33")
            A("s_add_u32 s24, s24, 112")
            A("s_lshl_b32 s24, s24, 17")
            A("s_add_u32 s50, s50, s24")
            A("s_add_u32 s51, s51, s24")
            A("s_nop 4")
            for q in (2, 3, 0, 1):
                o = OA + 12 * q
                A("v_rcp_f32 v8, %s" % v(o + 8))
                A("s_nop 0")
                for i in range(8):
                    A("v_mul_f32 %s, %s, v8" % (v(o + i), v(o + i)))
                pack(28 + 4 * q, o, o + 4)
                A("buffer_store_dwordx4 %s, v19, s[12:15], %s offen offset:%d sc1" % (v(28 + 4 * q, 4), s(50 + (q >> 1)), (q & 1) * 1024))
            A("s_barrier")
            A("s_mov_b32 s31, 1")
            A("s_cmp_lt_u32 s28, 4")
            A("s_cbranch_scc1 L_g2_q0")
            g2_loader_setup(A)
            A("s_waitcnt vmcnt(20)")
            A("s_branch L_g2_com")
            A.label("L_g2_q0")
            A("s_waitcnt vmcnt(0)")
            A("s_branch L_g2_com")
        else:
            st(A, "epi")
            A("s_mov_b32 s31, 0")
            A("s_cmp_lt_u32 s28, 4")
            A("s_cbranch_scc1 L_g2_p0")
            g2_loader_setup(A)
            A.label("L_g2_p0")
            BR, T = EX + 8, FR0 + 44
            for t in range(7):
                b = CR + 28 + 2 * t
                A("v_lshlrev_b32 %s, 16, %s" % (v(BR + 4 * t), v(b)))
                A("v_and_b32 %s, 0xffff0000, %s" % (v(BR + 4 * t + 1), v(b)))
                A("v_lshlrev_b32 %s, 16, %s" % (v(BR + 4 * t + 2), v(b + 1)))
                A("v_and_b32 %s, 0xffff0000, %s" % (v(BR + 4 * t + 3), v(b + 1)))
            c0 = -2.0 * math.sqrt(2.0 / math.pi) * math.log2(math.e)
            A("v_mov_b32 v8, %s" % f32(c0))
            A("v_mov_b32 v9, %s" % f32(c0 * 0.044715))
            A("s_mul_i32 s38, s30, 7")
            A("s_lshl_b32 s38, s38, 17")
            A("s_add_u32 s40, s40, s38")
            A("s_add_u32 s41, s41, s38")
            A("s_lshl_b32 s39, s33, 9")
            A("s_add_u32 s39, s39, 0x%x" % (3 << 17))
            A("s_add_u32 s42, s40, s39")
            A("s_add_u32 s43, s41, s39")
            A("s_lshl_b32 s39, s33, 19")
            A("s_add_u32 s40, s40, s39")
            A("s_add_u32 s41, s41, s39")
            A("v_and_b32 v10, 0xf0, v19")
            A("v_and_b32 v2, 16, v1")
            A("v_lshl_add_u32 v10, v2, 6, v10")
            A("v_and_b32 v2, 32, v1")
            A("v_lshl_add_u32 v10, v2, 3, v10")
            def act2(blks, d):
                P = [(g.accr(mb, nb) + i, T + 4 * h + i, mb, nb, i) for h, (mb, nb) in enumerate(blks) for i in (0, 2)]
                for c, t, mb, nb, i in P:
                    A("v_pk_fma_f32 %s, %s, %s, %s op_sel:[0,1,0] op_sel_hi:[1,1,1]" % (v(t, 2), v(CR + 4 * nb + i, 2), v(EX + 2 * mb, 2), v(BR + 4 * nb + i, 2)))
                for c, t, mb, nb, i in P:
                    A("v_pk_fma_f32 %s, %s, %s, %s op_sel_hi:[1,0,1]" % (v(c, 2), v(c, 2), v(EX + 2 * mb, 2), v(t, 2)))
                for c, t, mb, nb, i in P:
                    A("v_pk_mul_f32 %s, %s, %s" % (v(t, 2), v(c, 2), v(c, 2)))
                for c, t, mb, nb, i in P:
                    A("v_pk_fma_f32 %s, %s, v[8:9], v[8:9] op_sel:[0,1,0] op_sel_hi:[1,1,0]" % (v(t, 2), v(t, 2)))
                for c, t, mb, nb, i in P:
                    A("v_pk_mul_f32 %s, %s, %s" % (v(t, 2), v(t, 2), v(c, 2)))
                for i in range(8): A("v_exp_f32 %s, %s" % (v(T + i), v(T + i)))
                for c, t, mb, nb, i in P:
                    A("v_pk_add_f32 %s, %s, 1.0 op_sel_hi:[1,0]" % (v(t, 2), v(t, 2)))
                for i in range(8): A("v_rcp_f32 %s, %s" % (v(T + i), v(T + i)))
                for c, t, mb, nb, i in P:
                    A("v_pk_mul_f32 %s, %s, %s" % (v(c, 2), v(c, 2), v(t, 2)))
                for k_, (c, t, mb, nb, i) in enumerate(P):
                    A("v_cvt_pk_bf16_f32 %s, %s, %s" % (v(d + k_), v(c), v(c + 1)))
            k = 0
            for pr in range(3):
                for mb in range(4):
                    d = T + 8 + 4 * (k % 6); k += 1
                    act2([(mb, 2 * pr), (mb, 2 * pr + 1)], d)
                    A("buffer_store_dwordx4 %s, v19, s[12:15], %s offen offset:%d sc1" % (v(d, 4), s(40 + (mb >> 1)), (mb & 1) * 1024))
                if pr < 2:
                    A("s_add_u32 s40, s40, 0x20000")
                    A("s_add_u32 s41, s41, 0x20000")
            for h in range(2):
                d = T + 8 + 4 * (k % 6); k += 1
                act2([(2 * h, 6), (2 * h + 1, 6)], d)
                A("s_nop 1")
                A("v_permlane16_swap_b32 %s, %s" % (v(d), v(d + 2)))
                A("v_permlane16_swap_b32 %s, %s" % (v(d + 1), v(d + 3)))
                A("buffer_store_dwordx4 %s, v10, s[12:15], %s offen sc1" % (v(d, 4), s(42 + h)))
            A("s_lshl_b32 s27, s29, 11")
            A("s_add_u32 s27, s27, %d" % (16384 + 64))
            A("s_lshr_b32 s26, s30, 2")
            A("s_lshl_b32 s26, s26, 7")
            A("s_add_u32 s26, s26, 256")
            A("v_mov_b32 v22, 0")
            A("v_mov_b32 v23, 1")
            A("v_mul_lo_u32 v21, v1, s26")
            A("s_waitcnt vmcnt(0)")
            A("s_barrier")
            A("s_cmp_lg_u32 s28, 0")
            A("s_cbranch_scc1 L_g2_com")
            A("s_mov_b64 exec, 3")
            A("buffer_atomic_add v23, v21, s[52:55], s27 offen sc1")
            A("s_mov_b64 exec, -1")
    gen_g2f(A)
    A.label("L_k1_done")
    A("s_endpgm")
    kernel_desc(A, name, 256, 96)
    return "; @launch %sgrid=(256,1,1) block=(512,1,1) lds=163840" % (("kernel=%s " % name) if os.environ.get("LIST") else "")

def main2(out):
    A = Asm()
    A.raw('.amdgcn_target "amdgcn-amd-amdhsa--gfx950"')
    ls = [gen_k1(A)]
    hdr = "; generated by dev/kf.py\n" + "\n".join(ls) + "\n"
    open(out, "w").write(hdr + A.text())

if __name__ == "__main__":
    main2(sys.argv[1] if len(sys.argv) > 1 else "cdna_kernels/%s.s" % NAME)
```

```python
from gen import *

STL = os.environ.get("STL", "start,p0,loop,epi").split(",")
def st(A, name):
    if name in STL: stamp(A, STL.index(name))

SCHEDS = {
 "a": {"pre": "W0 A0_0 A0_1 W1", "post": "A1_0 A1_1 W2", -1: "W3", 0: "A2_0 A2_1 W4", 1: "W5 A3_0 S0 S1 S2 S3", 2: "W6 A3_1 S4 S5 S6 S7",
       3: "W7 A4_0", 4: "W8 A4_1", 5: "W9 A5_0", 6: "W10 A5_1", 7: "W11 A6_0"},
 "b": {"pre": "W0 A0_0 A0_1 W1", "post": "A1_0 A1_1 W2 S0 S1 S2 S3", -1: "W3 S4 S5 S6 S7", 0: "A2_0 A2_1 W4", 1: "W5 A3_0", 2: "W6 A3_1",
       3: "W7 A4_0", 4: "W8 A4_1", 5: "W9 A5_0", 6: "W10 A5_1", 7: "W11 A6_0"},
 "c": {"pre": "W0 A0_0 A0_1 W1", "pre2": "S0 S1 S2 S3 S4 S5 S6 S7", "post": "A1_0 A1_1 W2", -1: "W3", 0: "A2_0 A2_1 W4", 1: "W5 A3_0", 2: "W6 A3_1",
       3: "W7 A4_0", 4: "W8 A4_1", 5: "W9 A5_0", 6: "W10 A5_1", 7: "W11 A6_0"},
 "d": {"pre": "W0 A0_0 A0_1 W1", "post": "A1_0 A1_1 W2", -1: "W3", 0: "A2_0 A2_1 W4 S0 S1", 1: "W5 A3_0 S2 S3", 2: "W6 A3_1 S4 S5",
       3: "W7 A4_0 S6 S7", 4: "W8 A4_1", 5: "W9 A5_0", 6: "W10 A5_1", 7: "W11 A6_0"},
}
SCHED = SCHEDS[os.environ.get("SCHED", "a")]
WS_KV, WS_SYNC = 8 * MB_, 48 * MB_
K1_WR, K1_WST, K1_SP = 98304, 14336, 155648

def reduce64(A, x, t, op="v_add_f32"):
    for r in (8, 4, 2, 1):
        A("s_nop 1")
        A("%s_dpp %s, %s, %s row_ror:%d row_mask:0xf bank_mask:0xf" % (op, v(x), v(x), v(x), r))
    xlane_sum(A, x, t, op=op, ror8=False)

def k1_stats(A, T):
    X, a_, b_, m_, q_ = T + 8, T + 24, T + 25, T + 26, T + 27
    for i in range(8):
        A("v_lshlrev_b32 %s, 16, %s" % (v(X + 2 * i), v(T + i)))
        A("v_and_b32 %s, 0xffff0000, %s" % (v(X + 2 * i + 1), v(T + i)))
    A("v_add_f32 %s, %s, %s" % (v(a_), v(X), v(X + 1)))
    A("v_add_f32 %s, %s, %s" % (v(b_), v(X + 2), v(X + 3)))
    for i in range(4, 16, 2):
        A("v_add_f32 %s, %s, %s" % (v(a_), v(a_), v(X + i)))
        A("v_add_f32 %s, %s, %s" % (v(b_), v(b_), v(X + i + 1)))
    A("v_add_f32 %s, %s, %s" % (v(a_), v(a_), v(b_)))
    reduce64(A, a_, b_)
    A("v_mul_f32 %s, %s, %s" % (v(m_), f32(1.0 / 1024), v(a_)))
    for i in range(16):
        A("v_sub_f32 %s, %s, %s" % (v(X + i), v(X + i), v(m_)))
    A("v_mul_f32 %s, %s, %s" % (v(a_), v(X), v(X)))
    A("v_mul_f32 %s, %s, %s" % (v(b_), v(X + 1), v(X + 1)))
    for i in range(2, 16, 2):
        A("v_fmac_f32 %s, %s, %s" % (v(a_), v(X + i), v(X + i)))
        A("v_fmac_f32 %s, %s, %s" % (v(b_), v(X + i + 1), v(X + i + 1)))
    A("v_add_f32 %s, %s, %s" % (v(a_), v(a_), v(b_)))
    reduce64(A, a_, b_)
    A("v_mul_f32 %s, %s, %s" % (v(q_), f32(1.0 / 1024), v(a_)))
    def std(dst, var):
        A("v_mov_b32 %s, %s" % (v(dst), v(var)))
        rnd_bf16(A, dst)
        A("v_add_f32 %s, %s, %s" % (v(dst), f32(1e-5), v(dst)))
        rnd_bf16(A, dst)
        A("v_sqrt_f32 %s, %s" % (v(dst), v(dst)))
        A("s_nop 0")
        rnd_bf16(A, dst)
    s1, mb_, s2, m2 = X, X + 1, X + 2, X + 3
    std(s1, q_)
    A("v_rcp_f32 %s, %s" % (v(T), v(s1)))
    A("v_mov_b32 %s, %s" % (v(mb_), v(m_)))
    rnd_bf16(A, mb_)
    A("v_mul_f32 %s, -%s, %s" % (v(T + 1), v(T), v(mb_)))
    A("v_sub_f32 %s, %s, %s" % (v(m2), v(m_), v(mb_)))
    A("v_mul_f32 %s, %s, %s" % (v(m2), v(m2), v(T)))
    rnd_bf16(A, m2)
    A("v_mul_f32 %s, %s, %s" % (v(q_), v(q_), v(T)))
    A("v_mul_f32 %s, %s, %s" % (v(q_), v(q_), v(T)))
    std(s2, q_)
    A("v_rcp_f32 %s, %s" % (v(s2), v(s2)))
    A("v_fma_f32 %s, %s, %s, %s" % (v(m2), v(m2), v(s1), v(mb_)))
    A("v_mul_f32 %s, %s, %s" % (v(T + 2), v(T), v(s2)))
    A("v_mul_f32 %s, -%s, %s" % (v(T + 3), v(T + 2), v(m2)))

def attn_body(A, tag, Qr, O, M, base, sN, stubs):
    S_, KF, VF, ONES, NINF = 28, 156, 172, 188, 7
    def Sr(j, qb, kb): return S_ + 16 * j + 8 * qb + 4 * kb
    def rd(F, j, off):
        for k in range(2):
            A("ds_read_b128 %s, %s offset:%d" % (v(F + 8 * (j & 1) + 4 * k, 4), v(base), j * 4096 + off + k * 1024))
    def mx(j, qb, kb):
        b, out = Sr(j, qb, kb), []
        if j == 0:
            for r in range(4):
                m = s(36 + 2 * r, 2) if qb == kb else ("s[44:45]" if kb else "s[46:47]")
                out.append("v_cndmask_b32 %s, %s, v7, %s" % (v(b + r), v(b + r), m))
        for i in (0, 2):
            src0 = v(M + qb) if (j == 0 and kb == 0 and i == 0) else v(8 + qb)
            out.append("v_max3_f32 %s, %s, %s, %s" % (v(8 + qb), src0, v(b + i), v(b + i + 1)))
        return out
    def pv(j):
        out = []
        for d in range(3):
            for qb in range(2):
                aop = v(VF + 8 * (j & 1) + 4 * d, 4) if d < 2 else v(ONES, 4)
                c = v(O + 12 * qb + 4 * d, 4)
                out.append("v_mfma_f32_16x16x32_bf16 %s, %s, %s, %s" % (c, aop, v(Sr(j, qb, 0), 4), c))
        return out
    l2, l3 = (A.newlabel(tag + x) for x in "bc")
    rd(KF, 0, 0)
    rd(VF, 0, 2048)
    for j in range(8):
        if j < 7:
            rd(KF, j + 1, 0)
            A("s_waitcnt lgkmcnt(%d)" % (4 if j == 0 else 2))
        else:
            A("s_waitcnt lgkmcnt(0)")
        for qb in range(2):
            for kb in range(2):
                A("v_mfma_f32_16x16x32_bf16 %s, %s, %s, 0" % (v(Sr(j, qb, kb), 4), v(KF + 8 * (j & 1) + 4 * kb, 4), v(Qr + 4 * qb, 4)))
                if j:
                    for i in mx(j - 1, qb, kb): A(i)
        tail = ["s_nop %d" % (5 if j else 7)] + [i for qb in range(2) for kb in range(2) for i in mx(j, qb, kb)]
        if j < 7:
            lab = A.newlabel(tag + "x")
            A("s_cmp_eq_u32 %s, %d" % (s(sN), j + 1))
            A("s_cbranch_scc1 %s" % lab)
            stubs.append((lab, tail, l2))
        else:
            for i in tail: A(i)
    A.label(l2)
    for sw in ("16", "32"):
        A("v_mov_b32 v10, v8")
        A("v_mov_b32 v11, v9")
        A("s_nop 0")
        A("v_permlane%s_swap_b32 v8, v10" % sw)
        A("v_permlane%s_swap_b32 v9, v11" % sw)
        A("v_max_f32 v8, v8, v10")
        A("v_max_f32 v9, v9, v11")
    for qb in range(2):
        A("v_sub_f32 %s, %s, %s" % (v(10 + qb), v(M + qb), v(8 + qb)))
        A("v_mul_f32 %s, s48, %s" % (v(10 + qb), v(10 + qb)))
        A("v_exp_f32 %s, %s" % (v(10 + qb), v(10 + qb)))
        A("v_mov_b32 %s, %s" % (v(M + qb), v(8 + qb)))
        A("v_mul_f32 %s, s48, %s" % (v(8 + qb), v(8 + qb)))
    for qb in range(2):
        for i in range(12):
            A("v_mul_f32 %s, %s, %s" % (v(O + 12 * qb + i), v(O + 12 * qb + i), v(10 + qb)))
    for j in range(8):
        fm = ["v_fma_f32 %s, %s, s48, -%s" % (v(Sr(j, 0, 0) + i), v(Sr(j, 0, 0) + i), v(8 + i // 8)) for i in range(16)]
        ex = ["v_exp_f32 %s, %s" % (v(Sr(j, 0, 0) + i), v(Sr(j, 0, 0) + i)) for i in range(16)]
        cv = ["v_cvt_pk_bf16_f32 %s, %s, %s" % (v(Sr(j, qb, 0) + i), v(Sr(j, qb, 0) + 2 * i), v(Sr(j, qb, 0) + 2 * i + 1)) for qb in range(2) for i in range(4)]
        mm = pv(j - 1) if j else []
        for i in range(4): A(fm[i])
        if j: A("s_waitcnt lgkmcnt(2)")
        for k in range(8):
            if mm and 1 <= k <= 6: A(mm[k - 1])
            A(ex[2 * k]); A(ex[2 * k + 1])
            if k + 2 < 8: A(fm[2 * k + 4]); A(fm[2 * k + 5])
            if k >= 1: A(cv[k - 1])
        A("s_nop 0")
        A(cv[7])
        tail = ["s_waitcnt lgkmcnt(0)", "s_nop 0"] + pv(j)
        if j < 7:
            lab = A.newlabel(tag + "y")
            A("s_cmp_eq_u32 %s, %d" % (s(sN), j + 1))
            A("s_cbranch_scc1 %s" % lab)
            stubs.append((lab, tail, l3))
            rd(VF, j + 1, 2048)
        else:
            for i in tail: A(i)
    A.label(l3)

G2R, G2ST = 4, 32768
PFD = int(os.environ.get("PFD", "0"))
SLP = int(os.environ.get("SLP", "8"))
G2_SP = int(os.environ.get("G2SP", "40"))
def g2_slot(sl): return (sl & 1) * 65536 + (sl >> 1) * G2ST
def g2_dma_w(A, slot):
    for ch in range(2):
        A("s_add_u32 m0, s35, %d" % (g2_slot(slot) + 16384 + ch * 1024))
        A("s_nop 0")
        for i in range(2):
            A("buffer_load_dwordx4 %s, s[8:11], s57 offen offset:%d lds" % (v(24 + ch + 2 * i), i * 2048))
    A("s_add_u32 s57, s57, 0x20000")
    A("s_cmp_eq_u32 s57, 0x%x" % (3584 * 2048))
    A("s_cselect_b32 s57, 0, s57")
def g2_dma_a(A, slot):
    A("s_add_u32 m0, s35, %d" % g2_slot(slot))
    A("s_nop 0")
    for i in range(4):
        A("buffer_load_dwordx4 v19, s[12:15], s56 offen offset:%d lds" % (i * 1024))
    A("s_add_u32 s56, s56, 0x40000")
    A("s_cmp_ge_u32 s56, s58")
    A("s_cselect_b32 s34, s58, 0")
    A("s_sub_u32 s56, s56, s34")
def g2_loader_setup(A):
    A("s_sub_u32 s35, s28, 4")
    A("s_lshr_b32 s56, s35, 1")
    A("s_lshl_b32 s56, s56, 17")
    A("s_lshl_b32 s34, s29, 14")
    A("s_add_u32 s56, s56, s34")
    A("s_and_b32 s34, s30, 4")
    A("s_lshl_b32 s34, s34, 11")
    A("s_add_u32 s56, s56, s34")
    A("s_and_b32 s34, s35, 1")
    A("s_lshl_b32 s34, s34, 12")
    A("s_add_u32 s56, s56, s34")
    A("v_lshrrev_b32 v25, 3, v1")
    A("v_lshlrev_b32 v25, 11, v25")
    A("v_bfe_u32 v21, v1, 4, 2")
    A("v_lshlrev_b32 v21, 1, v21")
    A("v_and_b32 v23, 7, v1")
    A("v_xor_b32 v21, v21, v23")
    A("v_lshl_add_u32 v25, v21, 4, v25")
    A("s_lshl_b32 s34, s35, 15")
    A("s_and_b32 s57, s30, 8")
    A("s_lshl_b32 s57, s57, 7")
    A("s_add_u32 s34, s34, s57")
    A("s_and_b32 s57, s30, 3")
    A("s_lshl_b32 s57, s57, 8")
    A("s_add_u32 s34, s34, s57")
    A("v_add_u32 v24, s34, v25")
    A("v_add_u32 v25, %d, v24" % 128)
    A("v_add_u32 v26, %d, v24" % (16384 - 2048))
    A("v_add_u32 v27, %d, v24" % (16384 + 128 - 2048))
    A("s_lshr_b32 s34, s30, 2")
    A("s_mul_i32 s34, s34, 14")
    A("s_mul_i32 s57, s31, %d" % G2_SP)
    A("s_add_u32 s57, s57, s34")
    A("s_cmp_ge_u32 s57, 56")
    A("s_cselect_b32 s34, 56, 0")
    A("s_sub_u32 s57, s57, s34")
    A("s_add_u32 s59, s56, 0x%x" % (112 * 131072))
    A("s_lshl_b32 s34, s57, 18")
    A("s_add_u32 s56, s56, s34")
    A("s_lshl_b32 s57, s57, 17")
    A("s_lshl_b32 s35, s35, 12")
    srd(A, 8, 90, 3584 * 2048)
    A("s_mov_b32 s58, 0x%x" % (112 * 131072))

def gen_g2f(A):
    R, KS, ST = G2R, 2, G2ST
    SP, SQ = G2_SP, 72 - G2_SP
    assert SP % 4 == 0 and SP <= 48
    NS = len(STL) + 2
    A.label("L_g2_com")
    st(A, "k1e")
    A("v_mov_b32 v21, 0")
    A("s_cmp_eq_u32 s31, 0")
    A("s_cselect_b32 s44, %d, %d" % (SP // R - 1, SQ // R - 1))
    A("s_cmp_ge_u32 s28, 4")
    A("s_cbranch_scc1 L_g2_loader")
    A("s_add_u32 s23, s27, 128")
    A("s_load_dwordx2 s[4:5], s[0:1], 0")
    A("s_load_dwordx4 s[24:27], s[0:1], 56")
    A("s_lshr_b32 s34, s30, 2")
    A("s_mul_i32 s34, s34, 14")
    A("s_mul_i32 s36, s31, %d" % SP)
    A("s_add_u32 s36, s36, s34")
    A("s_add_u32 s36, s36, 4")
    A("s_cmp_ge_u32 s36, 56")
    A("s_cselect_b32 s34, 56, 0")
    A("s_sub_u32 s36, s36, s34")
    A("s_lshl_b32 s36, s36, 17")
    srd(A, 12, 90, 3584 * 2048)
    A("s_lshl_b32 s29, s29, 1")
    A("s_bfe_u32 s34, s30, 0x10002")
    A("s_add_u32 s29, s29, s34")
    A("s_lshr_b32 s34, s30, 3")
    A("s_lshl_b32 s34, s34, 2")
    A("s_and_b32 s30, s30, 3")
    A("s_add_u32 s30, s30, s34")
    A("v_mov_b32 v3, v19")
    A("v_mov_b32 v18, 0")
    A("v_lshrrev_b32 v20, 2, v1")
    A("v_lshlrev_b32 v20, 11, v20")
    A("v_and_b32 v7, 3, v1")
    A("v_lshl_add_u32 v20, v7, 6, v20")
    A("s_lshl_b32 s34, s28, 15")
    A("s_lshl_b32 s37, s30, 8")
    A("s_add_u32 s34, s34, s37")
    A("v_add_u32 v20, s34, v20")
    touch = ["buffer_load_dword v18, v20, s[12:15], s36 offen", "s_add_u32 s36, s36, 0x20000",
             "s_cmp_eq_u32 s36, 0x%x" % (3584 * 2048), "s_cselect_b32 s36, 0, s36"] if PFD else []
    for i in range(PFD - 4):
        for t in touch: A(t)
    assert PFD == 0 or (PFD % 4 == 0 and PFD < 56 - SP)
    A("s_cmp_eq_u32 s31, 0")
    A("s_cselect_b32 s37, -1, %d" % (3 + PFD // 4))
    A("s_and_b32 s32, s28, 1")
    A("s_lshr_b32 s33, s28, 1")
    A("s_lshl_b32 s34, s32, 12")
    A("v_add_u32 v8, s34, v3")
    A("v_add_u32 v9, 0x10000, v8")
    A("v_lshrrev_b32 v6, 5, v1")
    A("v_lshlrev_b32 v6, 11, v6")
    A("v_bfe_u32 v7, v1, 2, 3")
    A("v_lshl_add_u32 v6, v7, 7, v6")
    A("v_bfe_u32 v7, v1, 3, 2")
    A("v_lshl_add_u32 v6, v7, 5, v6")
    A("v_and_b32 v7, 3, v1")
    A("v_lshl_add_u32 v6, v7, 3, v6")
    A("s_lshl_b32 s34, s33, 10")
    A("s_add_u32 s34, s34, 16384")
    A("v_add_u32 v10, s34, v6")
    for t in range(1, 4):
        A("v_xor_b32 %s, %d, v10" % (v(10 + t), 32 * t))
    for t in range(4):
        A("v_add_u32 %s, 0x10000, %s" % (v(14 + t), v(10 + t)))
    ACC, FR0, PT = 24, 88, 152
    A("v_and_b32 v19, 15, v1")
    A("v_lshlrev_b32 v19, 11, v19")
    A("v_lshrrev_b32 v7, 4, v1")
    A("v_lshlrev_b32 v7, 3, v7")
    A("s_lshl_b32 s38, s30, 8")
    A("s_lshl_b32 s39, s33, 7")
    A("s_add_u32 s38, s38, s39")
    A("s_lshl_b32 s39, s29, 18")
    A("s_lshl_b32 s47, s32, 17")
    A("s_add_u32 s39, s39, s47")
    A("s_add_u32 s39, s39, s38")
    A("s_lshl_b32 s48, s29, 3")
    A("s_add_u32 s48, s48, s30")
    A("s_lshl_b32 s48, s48, 2")
    A("s_add_u32 s48, s48, s28")
    A("s_lshl_b32 s49, s48, 5")
    A("s_add_u32 s49, s49, 0x%x" % (WS_FLAG - WS_PART))
    A("s_lshl_b32 s48, s48, 14")
    srd(A, 8, 6, WS_FLAG - WS_PART + 16384, WS_PART)
    def read_fn(slot, u, st_):
        hi, base = slot & 1, (slot >> 1) * ST
        xs = [["ds_read_b128 %s, %s offset:%d" % (v(g.xf(st_, mb), 4), v(8 + hi), base + u * 8192 + mb * 1024)] for mb in range(4)]
        ws = []
        for t in range(4):
            for j in range(2):
                ws.append(["ds_read_b64_tr_b16 %s, %s offset:%d" % (v(g.wf(st_, t) + 2 * j, 2), v(10 + 4 * hi + t), base + u * 8192 + j * 4096)])
        return xs[:1] + ws + xs[1:]
    g = Gemm(A, "g2", 4, 4, KS, R, 3 * R, ACC, FR0, read_fn, lambda sl: [touch], 0, cnt=44, rd_last=11)
    for i in range(64):
        A("v_mov_b32 %s, 0" % v(ACC + i))
    A("v_lshrrev_b32 v23, 4, v1")
    A("v_and_b32 v6, 1, v23")
    A("v_lshlrev_b32 v6, 5, v6")
    A("v_lshrrev_b32 v23, 1, v23")
    A("v_lshl_add_u32 v6, v23, 4, v6")
    A("v_add_u32 v6, v6, v19")
    g.period(-1, R - 1, True, False, None, first=True)
    st(A, "g0")
    A("s_lshl_b32 s50, s28, 1")
    A("s_add_u32 s50, s50, s31")
    A("s_cmp_lg_u32 s50, 1")
    A("s_cbranch_scc1 L_g2_loop")
    A("v_mov_b32 v22, 1")
    A("s_mov_b64 exec, 1")
    A("buffer_atomic_add v22, v21, s[52:55], s23 offen sc1")
    A("s_mov_b64 exec, -1")
    A.label("L_g2_loop")
    for p in range(R):
        g.period(p, p, True, True, None)
    A("s_sub_u32 s44, s44, 1")
    if PFD:
        A("s_cmp_eq_u32 s44, s37")
        A("s_cselect_b32 s12, s92, s12")
        A("s_cselect_b32 s13, s93, s13")
        A("s_cselect_b32 s14, 0x200000, s14")
        A("s_cselect_b32 s36, 0, s36")
    A("s_waitcnt vmcnt(0)")
    A("v_readfirstlane_b32 s50, v18")
    A("buffer_load_dword v18, v21, s[8:11], s49 offen sc1")
    A("s_cmp_lg_u32 s44, 0")
    A("s_cbranch_scc1 L_g2_loop")
    A("s_cmp_lg_u32 s31, 0")
    A("s_cbranch_scc1 L_g2_poll")
    srd(A, 16, 4, 4 * MB_)
    srd(A, 40, 24, 2048)
    for t in range(4):
        A("buffer_load_dwordx2 %s, v7, s[40:43], s38 offen offset:%d" % (v(PT + 32 + 2 * t, 2), t * 32))
    for mb in range(4):
        A("s_add_u32 s47, s39, %d" % (mb * 32768))
        for h in range(2):
            A("buffer_load_dwordx4 %s, v6, s[16:19], s47 offen offset:%d" % (v(PT + 8 * mb + 4 * h, 4), h * 64))
    A("s_mov_b32 s50, 1")
    A("s_branch L_g2_np0")
    def fetch():
        for q in range(4):
            A("s_add_u32 s47, s48, %d" % (q * 4096))
            for i in range(4):
                A("buffer_load_dwordx4 %s, v3, s[8:11], s47 offen offset:%d sc1" % (v(PT + 16 * q + 4 * i, 4), i * 1024))
    A.label("L_g2_poll")
    st(A, "gp0")
    A("s_cmp_eq_u32 s50, 0")
    A("s_cbranch_scc1 L_g2_np0")
    fetch()
    A.label("L_g2_np0")
    for p in range(2):
        g.period(p, p, True, False, None)
    A("s_cmp_lg_u32 s50, 0")
    A("s_cbranch_scc1 L_g2_np1")
    A("s_waitcnt vmcnt(0)")
    A("v_readfirstlane_b32 s50, v18")
    A("s_cmp_eq_u32 s50, 0")
    A("s_cbranch_scc1 L_g2_np1")
    fetch()
    A.label("L_g2_np1")
    g.period(2, 2, True, False, None)
    A("s_waitcnt lgkmcnt(0)")
    g.period(R - 1, R - 1, False, False, None, barrier=False)
    A("s_cmp_lg_u32 s50, 0")
    A("s_cbranch_scc1 L_g2_np2")
    A.label("L_g2_poll1")
    A("buffer_load_dword v18, v21, s[8:11], s49 offen sc1")
    A("s_waitcnt vmcnt(0)")
    A("v_readfirstlane_b32 s50, v18")
    A("s_cmp_lg_u32 s50, 0")
    A("s_cbranch_scc1 L_g2_poll2")
    A("s_sleep 2")
    A("s_branch L_g2_poll1")
    A.label("L_g2_poll2")
    fetch()
    A.label("L_g2_np2")
    st(A, "g1")
    A("s_nop 7")
    A("s_cmp_lg_u32 s31, 0")
    A("s_cbranch_scc1 L_g2_fin")
    A("s_waitcnt vmcnt(0)")
    for t in range(4):
        b, bb = PT + 32 + 2 * t, PT + 40 + 4 * t
        A("v_lshlrev_b32 %s, 16, %s" % (v(bb), v(b)))
        A("v_and_b32 %s, 0xffff0000, %s" % (v(bb + 1), v(b)))
        A("v_lshlrev_b32 %s, 16, %s" % (v(bb + 2), v(b + 1)))
        A("v_and_b32 %s, 0xffff0000, %s" % (v(bb + 3), v(b + 1)))
    for d in range(PT, PT + 32, 4):
        A("v_permlane16_swap_b32 %s, %s" % (v(d), v(d + 2)))
        A("v_permlane16_swap_b32 %s, %s" % (v(d + 1), v(d + 3)))
    for mb in range(4):
        for t in range(4):
            c, x, bb, q = g.accr(mb, t), PT + 8 * mb + 2 * t, PT + 40 + 4 * t, PT + 56 + 4 * (t & 1)
            A("v_lshlrev_b32 %s, 16, %s" % (v(q), v(x)))
            A("v_and_b32 %s, 0xffff0000, %s" % (v(q + 1), v(x)))
            A("v_lshlrev_b32 %s, 16, %s" % (v(q + 2), v(x + 1)))
            A("v_and_b32 %s, 0xffff0000, %s" % (v(q + 3), v(x + 1)))
            for i in range(0, 4, 2):
                A("v_pk_add_f32 %s, %s, %s" % (v(q + i, 2), v(q + i, 2), v(bb + i, 2)))
            for i in range(0, 4, 2):
                A("v_pk_add_f32 %s, %s, %s" % (v(c + i, 2), v(c + i, 2), v(q + i, 2)))
        A("s_add_u32 s47, s48, %d" % (mb * 4096))
        for i in range(4):
            A("buffer_store_dwordx4 %s, v3, s[8:11], s47 offen offset:%d sc1" % (v(ACC + 16 * mb + 4 * i, 4), i * 1024))
    A("v_mov_b32 v22, 1")
    A("s_waitcnt vmcnt(0)")
    A("s_mov_b64 exec, 1")
    A("buffer_store_dword v22, v21, s[8:11], s49 offen sc1")
    A("s_mov_b64 exec, -1")
    stamp_out(A, 0, NS, 6, "s28")
    A("s_endpgm")
    A.label("L_g2_fin")
    srd(A, 16, 26, 4 * MB_)
    for mb in range(4):
        A("s_waitcnt vmcnt(%d)" % (12 - 4 * mb + 2 * mb))
        for i in range(0, 16, 2):
            A("v_pk_add_f32 %s, %s, %s" % (v(ACC + 16 * mb + i, 2), v(ACC + 16 * mb + i, 2), v(PT + 16 * mb + i, 2)))
        A("s_add_u32 s47, s39, %d" % (mb * 32768))
        for h in range(2):
            d = FR0 + 8 * mb + 4 * h
            for t in range(2):
                c = g.accr(mb, 2 * h + t)
                A("v_cvt_pk_bf16_f32 %s, %s, %s" % (v(d + 2 * t), v(c), v(c + 1)))
                A("v_cvt_pk_bf16_f32 %s, %s, %s" % (v(d + 2 * t + 1), v(c + 2), v(c + 3)))
            A("s_nop 1")
            A("v_permlane16_swap_b32 %s, %s" % (v(d), v(d + 2)))
            A("v_permlane16_swap_b32 %s, %s" % (v(d + 1), v(d + 3)))
            A("buffer_store_dwordx4 %s, v6, s[16:19], s47 offen offset:%d%s" % (v(d, 4), h * 64, OUTSC))
    stamp_out(A, 0, NS, 6, "s28")
    A("s_endpgm")
    A.label("L_g2_loader")
    A("s_add_u32 s38, s27, s26")
    A("s_add_u32 s39, s27, 128")
    A("s_cmp_eq_u32 s31, 0")
    A("s_cselect_b32 s38, s38, s27")
    A("s_cselect_b32 s39, s27, s39")
    A("s_cselect_b32 s41, 4, 16")
    A("s_cselect_b32 s46, 10, %d" % (52 - SP))
    A("s_cmp_eq_u32 s68, 0")
    A("s_cbranch_scc1 L_g2_hchk")
    st(A, "g0")
    A("v_mov_b32 v22, 0")
    A("s_waitcnt vmcnt(16)")
    A("s_barrier")
    A("s_branch L_g2_lloop")
    A.label("L_g2_hpoll")
    A("s_sleep %d" % SLP)
    A("buffer_load_dword v22, v21, s[52:55], s38 offen sc1")
    A("s_waitcnt vmcnt(0)")
    A.label("L_g2_hchk")
    A("v_readfirstlane_b32 s40, v22")
    A("s_cmp_lt_u32 s40, s41")
    A("s_cbranch_scc1 L_g2_hpoll")
    st(A, "g0")
    A("v_mov_b32 v22, 0")
    for sl in range(R):
        g2_dma_a(A, sl)
    A("s_waitcnt vmcnt(12)")
    A("s_barrier")
    outl = []
    def dma(slot):
        g2_dma_w(A, slot)
        g2_dma_a(A, slot)
        l1, l2, l3, l4 = (A.newlabel("g2o") for _ in range(4))
        A("s_sub_u32 s46, s46, 1")
        A("s_and_b32 s34, s46, 0xfffffffb")
        A("s_cbranch_scc0 %s" % l1)
        A.label(l2)
        outl.append((l1, l2, l3, l4))
    for p in range(R):
        A("s_waitcnt vmcnt(%d)" % (8, 12, 16, 16)[p])
        A("s_barrier")
        dma(p)
    A("s_sub_u32 s44, s44, 1")
    A.label("L_g2_lloop")
    for p in range(R):
        A("s_waitcnt vmcnt(%d)" % (8 * (R - 2)))
        A("s_barrier")
        dma(p)
    A("s_sub_u32 s44, s44, 1")
    A("s_cmp_lg_u32 s44, 0")
    A("s_cbranch_scc1 L_g2_lloop")
    for p in range(R - 1):
        A("s_waitcnt vmcnt(%d)" % (8 * (R - 2 - p)))
        A("s_barrier")
    for nm in ("g1",): st(A, nm)
    stamp_out(A, 0, NS, 6, "s28")
    A("s_endpgm")
    for l1, l2, l3, l4 in outl:
        A.label(l1)
        A("s_cmp_eq_u32 s46, 0")
        A("s_cbranch_scc1 %s" % l3)
        A("buffer_load_dword v22, v21, s[52:55], s39 offen sc1")
        A("s_branch %s" % l2)
        A.label(l4)
        A("s_sleep %d" % SLP)
        A("buffer_load_dword v22, v21, s[52:55], s39 offen sc1")
        A("s_waitcnt vmcnt(0)")
        A.label(l3)
        A("v_readfirstlane_b32 s40, v22")
        A("s_cmp_lt_u32 s40, 16")
        A("s_cbranch_scc1 %s" % l4)
        st(A, "gp0")
        A("s_cmp_eq_u32 s31, 0")
        A("s_cbranch_scc1 %s" % l2)
        srd(A, 8, 92, 1024 * 2048)
        A("s_mov_b32 s57, 0")
        A("s_mov_b32 s56, s59")
        A("s_mov_b32 s58, -1")
        A("s_branch %s" % l2)

def gen_k1(A):
    name = NAME + "_kernel"
    kernel_begin(A, name)
    A("s_cmp_ge_u32 s2, 256")
    A("s_cbranch_scc1 L_k1_done")
    st(A, "start")
    A("s_load_dwordx4 s[20:23], s[0:1], 0")
    A("s_load_dwordx4 s[24:27], s[0:1], 32")
    A("s_load_dwordx4 s[4:7], s[0:1], 72")
    A("s_load_dwordx2 s[90:91], s[0:1], 48")
    A("s_load_dwordx2 s[92:93], s[0:1], 16")
    A("v_and_b32 v1, 63, v0")
    A("v_lshrrev_b32 v2, 6, v0")
    A("v_lshlrev_b32 v19, 4, v1")
    A("v_readfirstlane_b32 s28, v2")
    A("s_and_b32 s29, s2, 1")
    A("s_lshl_b32 s29, s29, 2")
    A("s_bfe_u32 s30, s2, 0x20003")
    A("s_add_u32 s29, s29, s30")
    A("s_bfe_u32 s30, s2, 0x20001")
    A("s_lshl_b32 s30, s30, 2")
    A("s_lshr_b32 s31, s2, 6")
    A("s_add_u32 s30, s30, s31")
    A("s_and_b32 s32, s28, 3")
    A("s_lshr_b32 s33, s28, 2")
    if "nomir" not in OPT:
        A("s_mul_i32 s34, s33, 7")
        A("s_xor_b32 s32, s32, s34")
    A("s_lshl_b32 s31, s2, 3")
    A("s_add_u32 s31, s31, s28")
    A("s_lshl_b32 s34, s31, 11")
    A("s_waitcnt lgkmcnt(0)")
    st(A, "karg")
    srd(A, 8, 20, 4 * MB_)
    TS = 160
    A("buffer_load_dwordx4 %s, v19, s[8:11], s34 offen" % v(TS, 4))
    A("buffer_load_dwordx4 %s, v19, s[8:11], s34 offen offset:1024" % v(TS + 4, 4))
    A("v_lshrrev_b32 v3, 3, v1")
    A("v_lshlrev_b32 v3, 11, v3")
    A("v_and_b32 v7, 7, v1")
    A("v_lshrrev_b32 v2, 4, v1")
    A("v_xor_b32 v7, v7, v2")
    A("v_lshl_add_u32 v3, v7, 4, v3")
    A("v_xor_b32 v4, 64, v3")
    A("v_add_u32 v4, %d, v4" % (8 * 2048 - 1024))
    A("s_lshl_b32 s36, s29, 19")
    A("s_lshl_b32 s34, s28, 16")
    A("s_add_u32 s36, s36, s34")
    A("s_lshl_b32 s46, s28, 12")
    A("s_mov_b32 s37, 0")
    A("s_lshl_b32 s35, s28, 11")
    A("s_add_u32 s35, s35, %d" % K1_WR)
    w_chunk(A, 5, 1, 7)
    A("v_lshrrev_b32 v6, 4, v1")
    A("v_lshlrev_b32 v6, 3, v6")
    A("v_bfe_u32 v7, v1, 2, 2")
    A("v_add_u32 v6, v6, v7")
    A("s_bitcmp1_b32 s2, 5")
    A("s_cbranch_scc1 L_k1_w1")
    ACC = 20
    CSO = 65536
    for typ in ("qkv", "w1"):
        NB = 6 if typ == "qkv" else 7
        FR0 = ACC + 16 * NB
        EX = FR0 + 8 * (4 + NB)
        rowb = 6144 if typ == "qkv" else 7168
        SL, SD, CR = 224, 220, FR0
        if typ == "w1":
            A.label("L_k1_w1")
        if typ == "qkv":
            srd(A, 12, 22, 1024 * 6144)
            A("s_cmp_ge_u32 s28, 3")
            A("s_cselect_b32 s38, 1, 0")
            A("s_mul_i32 s39, s38, 3")
            A("s_sub_u32 s39, s28, s39")
            A("s_lshl_b32 s39, s39, 11")
            A("s_lshl_b32 s40, s30, 1")
            A("s_add_u32 s40, s40, s38")
            A("s_lshl_b32 s40, s40, 6")
            A("s_add_u32 s39, s39, s40")
        else:
            srd(A, 12, 24, 1024 * 7168)
            A("s_mul_i32 s39, s30, 448")
            A("s_lshl_b32 s40, s28, 6")
            A("s_add_u32 s39, s39, s40")
        A("s_movk_i32 s40, %d" % rowb)
        A("v_mul_lo_u32 v6, v6, s40")
        A("v_add3_u32 v5, v5, v6, s39")
        A("v_add_u32 v6, %d, v5" % (4 * rowb - 1024))
        A("s_movk_i32 s40, 7168")
        A("s_movk_i32 s49, 0x3f80")
        g = Gemm(A, "k1", 4, NB, 1, 4, 32, ACC, FR0, None, None, 0, swap_fn=(lambda nb: nb >= 4) if typ == "qkv" else None)
        def reads(stage_par, wslot, st, NB=NB, g=g):
            xs = [["ds_read_b128 %s, %s offset:%d" % (v(g.xf(st, mb), 4), v(8 + 2 * (mb >> 1) + stage_par), (mb & 1) * 2048)] for mb in range(4)]
            ws = []
            for t in range(NB):
                b, off = (16 + (t & 1), (t >> 1) * 2048) if t < 6 else (0, 0)
                for j in range(2):
                    ws.append(["ds_read_b64_tr_b16 %s, %s offset:%d" % (v(g.wf(st, t) + 2 * j, 2), v(b), wslot * K1_WST + off + j * 1024)])
            return xs[:1] + ws + xs[1:]
        for role in (0, 1):
            ops = []
            def a_half(h, tag):
                ops.extend([tag, tag])
                if h == 0:
                    return [["s_mov_b32 m0, s46", "s_nop 0", "buffer_load_dwordx4 v3, s[8:11], s36 offen lds"],
                            ["buffer_load_dwordx4 v4, s[8:11], s36 offen offset:1024 lds", "s_add_u32 s34, s36, 32768"]]
                return [["s_add_u32 m0, s46, 2048", "s_add_u32 s36, s36, 128", "buffer_load_dwordx4 v3, s[8:11], s34 offen lds"],
                        ["buffer_load_dwordx4 v4, s[8:11], s34 offen offset:1024 lds", "s_add_u32 s46, s46, 32768",
                         "s_cmp_ge_u32 s46, 98304", "s_cselect_b32 s38, 98304, 0", "s_sub_u32 s46, s46, s38"]]
            def w_st(slot, tag, role=role, rowb=rowb):
                if role: return []
                ops.extend([tag, tag])
                return [["s_add_u32 m0, s35, %d" % (slot * K1_WST), "s_nop 0", "buffer_load_dwordx4 v5, s[12:15], s37 offen lds"],
                        ["buffer_load_dwordx4 v6, s[12:15], s37 offen offset:1024 lds", "s_add_u32 s37, s37, %d" % (32 * rowb)]]
            def emit(fs):
                for f in fs:
                    for i in f: A(i)
            def younger(tags):
                last = max([i for i, t in enumerate(ops) if t in tags] + [-1])
                return len(ops) - 1 - last
            if role == 0:
                A("s_cmp_ge_u32 s28, %d" % NB)
                A("s_cbranch_scc1 L_k1_%s_role1" % typ)
            else:
                A.label("L_k1_%s_role1" % typ)
            ops.extend(["row", "row"])
            def item(t):
                if t[0] == "W": return w_st(int(t[1:]) & 3, t)
                if t[0] == "A": return a_half(int(t[-1]), t[:-2])
                i = int(t[1:])
                ops.append("pf")
                return [["buffer_load_dwordx4 %s, v18, s[16:19], s41 offen" % v(SL + 4 * i, 4), "s_add_u32 s41, s41, s42"]]
            def items(key):
                return [f for t in SCHED.get(key, "").split() for f in item(t)]
            emit(items("pre"))
            A("s_cmp_lt_u32 s2, 96")
            A("s_cselect_b32 s16, s22, s24")
            A("s_cselect_b32 s17, s23, s25")
            A("s_cselect_b32 s38, 6144, s40")
            A("s_cselect_b32 s39, 0, 96")
            A("s_lshl_b32 s18, s38, 10")
            A("s_cmp_ge_u32 s2, 208")
            A("s_cselect_b32 s18, 0, s18")
            A("s_mov_b32 s19, 0x00020000")
            A("s_sub_u32 s39, s2, s39")
            A("s_and_b32 s41, s39, 1")
            A("s_lshl_b32 s41, s41, 3")
            A("s_add_u32 s41, s41, s28")
            A("s_lshl_b32 s41, s41, 6")
            A("s_mul_i32 s41, s41, s38")
            A("s_lshr_b32 s39, s39, 1")
            A("s_lshl_b32 s39, s39, 7")
            A("s_add_u32 s41, s41, s39")
            A("v_lshrrev_b32 v18, 3, v1")
            A("v_mul_lo_u32 v18, v18, s38")
            A("v_and_b32 v2, 7, v1")
            A("v_lshl_add_u32 v18, v2, 4, v18")
            A("s_lshl_b32 s42, s38, 3")
            emit(items("pre2"))
            A("v_and_b32 v2, 15, v1")
            A("v_and_b32 v7, 1, v1")
            A("v_lshlrev_b32 v7, 4, v7")
            A("v_lshlrev_b32 v7, v7, s49")
            A("v_lshrrev_b32 v2, 1, v2")
            for i in range(4):
                A("v_cmp_eq_u32 vcc, %d, v2" % i)
                A("v_cndmask_b32 %s, 0, v7, vcc" % v(12 + i))
            A("v_and_b32 v2, 15, v1")
            A("v_lshlrev_b32 v8, 7, v2")
            A("v_lshrrev_b32 v2, 1, v2")
            A("v_lshrrev_b32 v7, 4, v1")
            A("v_xor_b32 v2, v2, v7")
            A("v_lshl_add_u32 v2, v2, 4, v8")
            A("s_lshl_b32 s38, s32, 12")
            A("s_sub_u32 s39, %d, s38" % (7 * 4096))
            A("v_add_u32 v8, s38, v2")
            A("v_add_u32 v10, s39, v2")
            A("v_xor_b32 v9, 64, v8")
            A("v_xor_b32 v11, 64, v10")
            tr_base(A, 0, 1, 7)
            A("s_mul_i32 s40, s33, %d" % ((3 if typ == "qkv" else 4) * 2048))
            A("s_add_u32 s40, s40, %d" % K1_WR)
            A("v_add_u32 v16, s40, v0")
            A("v_xor_b32 v17, 32, v16")
            if typ == "w1":
                A("v_and_b32 v0, 0xffffffe7, v0")
                A("v_and_b32 v7, 1, v1")
                A("v_lshlrev_b32 v7, 5, v7")
                A("v_xor_b32 v0, v0, v7")
                A("v_and_b32 v7, 2, v1")
                A("v_lshl_add_u32 v0, v7, 2, v0")
                A("s_lshl_b32 s40, s33, 4")
                A("s_add_u32 s40, s40, %d" % (K1_WR + 3 * 2048))
                A("v_add_u32 v0, s40, v0")
            for i in range(4):
                A("v_mov_b32 %s, 0" % v(20 + i))
            A("s_mov_b32 s47, 0")
            A("s_mov_b32 s50, 32768")
            A("s_mov_b32 s51, 32768")
            srd(A, 52, 6, 131072, WS_SYNC)
            srd(A, 56, 4, 256)
            st(A, "issued")
            A("s_waitcnt vmcnt(%d)" % younger(["row"]))
            st(A, "row")
            k1_stats(A, TS)
            st(A, "stats")
            for i in range(1, 4):
                A("v_cmp_eq_u32 vcc, %d, v1" % i)
                A("v_cndmask_b32 %s, %s, %s, vcc" % (v(TS), v(TS), v(TS + i)))
            A("v_lshlrev_b32 v2, 13, v1")
            A("s_lshl_b32 s38, s31, 2")
            A("s_add_u32 s39, s38, 32768")
            A("s_lshl_b32 s38, s31, 4")
            A("s_mov_b64 exec, 15")
            A("buffer_store_dword %s, v2, s[52:55], s39 offen sc1" % v(TS))
            A("s_mov_b64 exec, 1")
            A("buffer_store_dwordx4 v[20:23], v20, s[52:55], s38 offen sc1")
            A("s_mov_b64 exec, -1")
            ops.extend(["st"] * 2)
            emit(items("post"))
            def period(p, vm, do_a, do_w, rd=None, extra=None, g=g, NB=NB):
                n = 4 * NB
                A("s_waitcnt vmcnt(%d) lgkmcnt(0)" % vm)
                A("s_barrier")
                if extra: extra()
                if rd is None:
                    rd = reads((p + 1) & 1, (p + 1) & 3, (p + 1) & 1)
                if p < 0:
                    emit(rd + items(-1))
                    return
                if do_a == "sched":
                    dm = items(p)
                else:
                    dm = (w_st(p & 3, "W%d" % (p + 4)) if do_w else []) + (a_half(1 - (p & 1), "A%d" % ((p + 5) // 2)) if do_a else [])
                if p & 1 == 0:
                    upd = ["v_add_u32 v8, s50, v8", "v_add_u32 v10, s50, v10"]
                else:
                    upd = ["v_add_u32 v9, s50, v9", "v_add_u32 v11, s50, v11", "s_add_u32 s47, s47, s50",
                           "s_cmp_eq_u32 s47, 65536", "s_cselect_b32 s50, 0xffff0000, s51"]
                slots = [[] for _ in range(n)]
                for i, f in enumerate(rd):
                    slots[(i * (n - 4)) // len(rd)].append(f)
                for i, f in enumerate(dm):
                    slots[min(((2 * i + 1) * n) // (2 * len(dm)), n - 1)].append(f)
                slots[n - 2].append(upd)
                for i, m in enumerate(g.mfmas(p & 1)):
                    A(m if p else m[:m.rindex(",")] + ", 0")
                    for f in slots[i]:
                        for ins in f: A(ins)
            L = 2 if role else 4
            period(-1, younger(["A0", "W0"]), False, False)
            st(A, "p0")
            def cs_mfma():
                for i in range(8):
                    A("v_mfma_f32_16x16x32_bf16 %s, v[12:15], %s, %s" % (v(SD, 4), v(SL + 4 * i, 4), v(SD, 4) if i else "0"))
                A("s_lshl_b32 s38, s28, 10")
                A("s_add_u32 s38, s38, %d" % K1_SP)
                A("v_add_u32 v2, s38, v19")
            def cs_red():
                if True:
                    lab = A.newlabel("csr")
                    A("s_cmp_lg_u32 s28, 7")
                    A("s_cbranch_scc1 %s" % lab)
                    A("v_lshrrev_b32 v2, 3, v1")
                    A("v_lshlrev_b32 v2, 4, v2")
                    A("v_bfe_u32 v7, v1, 2, 1")
                    A("v_lshl_add_u32 v2, v7, 8, v2")
                    A("v_and_b32 v7, 3, v1")
                    A("v_lshl_add_u32 v2, v7, 2, v2")
                    A("v_add_u32 v2, %d, v2" % K1_SP)
                    for i in range(16):
                        A("ds_read_b32 %s, v2 offset:%d" % (v(SL + i), (i >> 1) * 1024 + (i & 1) * 128))
                    A("s_lshr_b32 s38, s2, 1")
                    A("s_lshl_b32 s38, s38, 8")
                    A("s_and_b32 s39, s2, 1")
                    A("s_mul_i32 s39, s39, 32768")
                    A("s_add_u32 s38, s38, s39")
                    A("s_add_u32 s38, s38, %d" % CSO)
                    A("v_lshlrev_b32 v2, 2, v1")
                    A("s_waitcnt lgkmcnt(0)")
                    for st in (8, 4, 2, 1):
                        for i in range(st):
                            A("v_add_f32 %s, %s, %s" % (v(SL + i), v(SL + i), v(SL + i + st)))
                    A("buffer_store_dword %s, v2, s[52:55], s38 offen sc1" % v(SL))
                    A.label(lab)
            for p in range(8):
                need = ["W%d" % (p + 1), "A%d" % ((p + 1) // 2)] + (["pf", "st"] if p == 6 else [])
                period(p, younger(need), "sched", True, extra=cs_mfma if p == 6 else cs_red if (p == 7 and role) else None)
                if p == 6: A("ds_write_b128 v2, %s" % v(SD, 4))
                if p == 3: st(A, "p4")
            assert younger(["W9", "A4"]) >= 2 * L or role
            lab = A.newlabel("k1loop")
            A("s_mov_b32 s44, 5")
            A.label(lab)
            for p in range(4, 8):
                period(p, 2 * L, True, True)
            if role == 1:
                l2 = A.newlabel("sig")
                A("s_lshl_b32 s38, s44, 3")
                A("s_add_u32 s38, s38, s28")
                A("s_cmp_lg_u32 s38, %d" % (5 * 8 + 7))
                A("s_cbranch_scc1 %s" % l2)
                A("v_mov_b32 v12, 1")
                A("v_mov_b32 v13, 0")
                A("s_mov_b64 exec, 1")
                A("buffer_atomic_add v12, v13, s[56:59], 0 offen sc1")
                A("s_mov_b64 exec, -1")
                A.label(l2)
            A("s_sub_u32 s44, s44, 1")
            A("s_cmp_lg_u32 s44, 0")
            A("s_cbranch_scc1 %s" % lab)
            def poll0():
                A("v_mov_b32 v3, 0")
                A("buffer_load_dword v4, v3, s[56:59], 0 offen sc1")
            def fetch(typ=typ):
                l1, l2, l3 = A.newlabel("pa"), A.newlabel("pb"), A.newlabel("pc")
                A("s_cmp_lg_u32 s28, 7")
                A("s_cbranch_scc1 %s" % l3)
                A.label(l1)
                A("v_readfirstlane_b32 s38, v4")
                A("s_cmp_ge_u32 s38, 256")
                A("s_cbranch_scc1 %s" % l2)
                A("buffer_load_dword v4, v3, s[56:59], 0 offen sc1")
                A("s_waitcnt vmcnt(0)")
                A("s_branch %s" % l1)
                A.label(l2)
                A("s_lshl_b32 s38, s29, 10")
                A("s_add_u32 s38, s38, %d" % (32768 if typ == "qkv" else 49152))
                A("s_add_u32 s41, s38, %d" % (8192 - 1024))
                A("s_mov_b32 m0, %d" % K1_SP)
                if typ == "qkv":
                    A("v_lshrrev_b32 v2, 4, v1")
                    A("v_and_b32 v7, 0xf0, v19")
                    A("v_lshl_add_u32 v2, v2, 12, v7")
                    A("s_lshl_b32 s39, s30, 8")
                    A("s_add_u32 s39, s39, %d" % (CSO - 2048))
                else:
                    A("v_mov_b32 v2, v19")
                    A("s_mul_i32 s39, s30, 896")
                    A("s_add_u32 s39, s39, %d" % (CSO - 2048 + 3072 * 4))
                A("s_add_u32 s40, s39, %d" % (32768 - 1024))
                A("buffer_load_dwordx4 v19, s[52:55], s38 offen sc1 lds")
                A("buffer_load_dwordx4 v19, s[52:55], s41 offen offset:1024 sc1 lds")
                A("buffer_load_dwordx4 v2, s[52:55], s39 offen offset:2048 sc1 lds")
                A("buffer_load_dwordx4 v2, s[52:55], s40 offen offset:3072 sc1 lds")
                if typ == "w1":
                    srd(A, 16, 26, 3584 * 2)
                    A("s_mov_b32 m0, %d" % (K1_SP + 4096))
                    A("s_mul_i32 s39, s30, 448")
                    A("buffer_load_dwordx4 v19, s[16:19], s39 offen lds")
                A.label(l3)
            def par_addr(typ=typ):
                A("v_lshlrev_b32 v7, 6, v1")
                A("s_lshl_b32 s38, s31, 12")
                srd(A, 16, 90, 3584 * 2048)
                A("buffer_load_dword v3, v7, s[16:19], s38 offen")
                srd(A, 16, 92, 1024 * 2048)
                A("buffer_load_dword v4, v7, s[16:19], s38 offen")
                A("s_lshl_b32 s38, s32, 7")
                A("s_sub_u32 s39, %d, s38" % (K1_SP + 7 * 128))
                A("s_add_u32 s38, s38, %d" % K1_SP)
                A("v_and_b32 v2, 15, v1")
                A("v_and_b32 v7, 48, v1")
                A("v_lshl_add_u32 v12, v2, 2, s38")
                A("v_lshl_add_u32 v13, v2, 2, s39")
                if typ == "qkv":
                    A("v_add_u32 v14, s38, v7")
                    A("v_add_u32 v15, s39, v7")
                    A("s_lshl_b32 s38, s33, 7")
                    A("s_add_u32 s38, s38, %d" % (K1_SP + 2048))
                    A("v_add_u32 v5, s38, v7")
                    A("v_lshl_add_u32 v6, v2, 2, s38")
                else:
                    A("s_lshl_b32 s38, s33, 9")
                    A("s_add_u32 s38, s38, %d" % (K1_SP + 2048))
                    A("v_add_u32 v5, s38, v7")
                    A("v_lshrrev_b32 v7, 1, v7")
                    A("s_lshl_b32 s38, s33, 8")
                    A("s_add_u32 s38, s38, %d" % (K1_SP + 4096))
                    A("v_add_u32 v14, s38, v7")
                    A("v_and_b32 v2, 16, v1")
                    A("v_lshrrev_b32 v7, 3, v1")
                    A("v_and_b32 v7, 4, v7")
                    A("v_add_u32 v2, v2, v7")
                    A("s_lshl_b32 s38, s33, 5")
                    A("s_add_u32 s38, s38, %d" % (K1_SP + 2048 + 384))
                    A("v_lshl_add_u32 v6, v2, 2, s38")
                    A("s_lshl_b32 s38, s33, 4")
                    A("s_add_u32 s38, s38, %d" % (K1_SP + 4096 + 192))
                    A("v_lshl_add_u32 v15, v2, 1, s38")
            pr = [["ds_read_b32 %s, %s offset:%d" % (v(EX + 2 * mb + h), v(12 + (mb >> 1)), (mb & 1) * 64 + h * 1024)] for mb in range(4) for h in range(2)]
            if typ == "qkv":
                C1 = CR + 18
                for h, c in enumerate((CR, C1)):
                    pr += [["ds_read_b128 %s, v5 offset:%d" % (v(c + 4 * t, 4), h * 1024 + (t >> 1) * 256 + (t & 1) * 64)] for t in range(4)]
                    pr += [["ds_read_b32 %s, v6 offset:%d" % (v(c + 16 + t), h * 1024 + 512 + t * 64)] for t in range(2)]
                pr += [["ds_read_b128 %s, %s offset:%d" % (v(EX + 8 + 8 * mb + 4 * h, 4), v(14 + (mb >> 1)), (mb & 1) * 64 + h * 1024)]
                       for mb in range(4) for h in range(2)]
            else:
                C1 = EX + 8
                for h, c in enumerate((CR, C1)):
                    pr += [["ds_read_b128 %s, %s offset:%d" % (v(c + 4 * t, 4), "v5" if t < 6 else "v6", h * 1024 + (t * 64 if t < 6 else 0))] for t in range(7)]
                pr += [["ds_read_b64 %s, %s offset:%d" % (v(CR + 28 + 2 * t, 2), "v14" if t < 6 else "v15", t * 32 if t < 6 else 0)] for t in range(7)]
            period(28, 2 * L, False, False, extra=poll0 if role else None)
            period(29, 0 if role else L, False, False, extra=fetch if role else None)
            period(30, 63 if role else 0, False, False, extra=par_addr)
            period(31, 2, False, False, rd=pr)
            if role == 0:
                A("s_branch L_k1_%s_epi" % typ)
        A.label("L_k1_%s_epi" % typ)
        st(A, "loop")
        A("s_waitcnt lgkmcnt(0)")
        for i in range(0, 18 if typ == "qkv" else 28, 2):
            A("v_pk_add_f32 %s, %s, %s" % (v(CR + i, 2), v(CR + i, 2), v(C1 + i, 2)))
        ND = 240 if typ == "qkv" else 208
        for mb in range(4):
            A("v_mov_b32 %s, %s" % (v(ND + 2 * mb), v(EX + 2 * mb + 1)))
            A("v_mov_b32 %s, %s" % (v(ND + 2 * mb + 1), v(EX + 2 * mb + 1)))
            A("v_mov_b32 %s, %s" % (v(EX + 2 * mb + 1), v(EX + 2 * mb)))
        if typ == "qkv":
            for i in range(4):
                A("v_mov_b32 %s, %s" % (v(ND + 8 + i), v(CR + 16 + i // 2)))
        srd(A, 12, 6, ACT_BYTES, WS_ACT)
        A("s_lshl_b32 s39, s29, 14")
        A("s_lshl_b32 s40, s32, 11")
        A("s_sub_u32 s41, %d, s40" % (7 * 2048))
        A("s_add_u32 s40, s40, s39")
        A("s_add_u32 s41, s41, s39")
        if typ == "qkv":
            T = 152
            def norm(mb, nb):
                c = g.accr(mb, nb)
                for i in (0, 2):
                    if nb < 4:
                        A("v_pk_mul_f32 %s, %s, %s" % (v(T + i, 2), v(CR + 4 * nb + i, 2), v(ND + 2 * mb, 2)))
                    else:
                        A("v_pk_mul_f32 %s, %s, %s" % (v(T + i, 2), v(EX + 12 + 8 * mb + i, 2), v(ND + 8 + 2 * (nb - 4), 2)))
                for i in (0, 2):
                    if nb < 4:
                        A("v_pk_fma_f32 %s, %s, %s, %s" % (v(c + i, 2), v(c + i, 2), v(EX + 2 * mb, 2), v(T + i, 2)))
                    else:
                        A("v_pk_fma_f32 %s, %s, %s, %s" % (v(c + i, 2), v(c + i, 2), v(EX + 8 + 8 * mb + i, 2), v(T + i, 2)))
            def pack(d, c0, c1):
                for h, c in enumerate((c0, c1)):
                    A("v_cvt_pk_bf16_f32 %s, %s, %s" % (v(d + 2 * h), v(c), v(c + 1)))
                    A("v_cvt_pk_bf16_f32 %s, %s, %s" % (v(d + 2 * h + 1), v(c + 2), v(c + 3)))
            srd(A, 16, 6, 8 * MB_, WS_KV)
            A("s_lshl_b32 s34, s29, 4")
            A("s_add_u32 s34, s34, s30")
            A("s_lshl_b32 s35, s34, 16")
            A("s_lshl_b32 s38, s33, 15")
            A("s_add_u32 s38, s38, s35")
            A("s_lshl_b32 s39, s32, 12")
            A("s_sub_u32 s43, %d, s39" % (7 * 4096))
            A("s_add_u32 s42, s38, s39")
            A("s_add_u32 s38, s38, s43")
            A("s_lshl_b32 s36, s33, 16")
            A("s_add_u32 s39, s39, s36")
            A("s_add_u32 s43, s43, s36")
            A("v_add_u32 v12, s43, v19")
            A("v_add_u32 v13, s39, v19")
            for grp in range(2):
                for k in range(4):
                    d = T + 4 + 4 * (grp * 4 + k)
                    if k < 2:
                        mb = 2 * grp + k
                        norm(mb, 2); norm(mb, 3)
                        pack(d, g.accr(mb, 2), g.accr(mb, 3))
                    else:
                        norm(2 * grp, 2 + k); norm(2 * grp + 1, 2 + k)
                        pack(d, g.accr(2 * grp, 2 + k), g.accr(2 * grp + 1, 2 + k))
                    A("buffer_store_dwordx4 %s, v19, s[16:19], %s offen offset:%d sc1" % (v(d, 4), "s38" if grp else "s42", k * 1024))
                    A("ds_write_b128 %s, %s offset:%d" % (v(12 + grp), v(d, 4), k * 1024))
            QR, OA, MA = 192, 208, 14
            for mb in range(4):
                norm(mb, 0); norm(mb, 1)
            for mb in range(4):
                pack(QR + 4 * mb, g.accr(mb, 0), g.accr(mb, 1))
            A("s_waitcnt lgkmcnt(0)")
            A("s_barrier")
            st(A, "epi")
            A("v_and_b32 v2, 15, v1")
            A("v_lshrrev_b32 v7, 4, v1")
            A("v_lshlrev_b32 v7, 2, v7")
            A("s_mov_b64 s[50:51], s[40:41]")
            for r in range(4):
                A("v_add_u32 v8, %d, v7" % r)
                A("v_cmp_lt_u32 %s, v2, v8" % s(36 + 2 * r, 2))
            A("s_mov_b64 s[44:45], -1")
            A("s_mov_b64 s[46:47], 0")
            A("v_mov_b32 v7, 0xff800000")
            for i in range(4):
                A("v_mov_b32 %s, 0x3f803f80" % v(188 + i))
                A("v_mov_b32 %s, v7" % v(MA + i))
            for i in range(48):
                A("v_mov_b32 %s, 0" % v(OA + i))
            A("s_mov_b32 s48, %s" % f32((32 ** -0.5) * math.log2(math.e)))
            A("s_mov_b32 s49, s48")
            A("s_add_u32 s20, s32, 1")
            A("s_sub_u32 s21, 8, s32")
            A("s_mov_b32 s22, 0")
            A("s_mov_b32 s31, 1")
            A("s_mov_b32 s68, 0")
            A("s_lshl_b32 s27, s29, 11")
            A("s_add_u32 s27, s27, %d" % (16384 + 64))
            A("s_lshl_b32 s23, s34, 7")
            A("s_add_u32 s23, s23, 16384")
            A("v_mov_b32 v18, 0")
            A("v_mov_b32 v20, 1")
            A("s_waitcnt vmcnt(0)")
            A("s_mov_b64 exec, 1")
            A("buffer_atomic_add v20, v18, s[52:55], s23 offen sc1")
            A("s_mov_b64 exec, -1")
            st(A, "at0")
            stubs = []
            A.label("L_k1_part")
            attn_body(A, "atB", QR + 8, OA + 24, MA + 2, 13, 21, stubs)
            A("s_cmp_lg_u32 s22, 0")
            A("s_cbranch_scc1 L_k1_g2pf")
            A("s_cmp_eq_u32 s29, 0")
            A("s_cbranch_scc1 L_k1_nofetch")
            st(A, "at1")
            A("s_sub_u32 s23, s23, 2048")
            A.label("L_k1_kvpoll")
            A("buffer_load_dword v20, v18, s[52:55], s23 offen sc1")
            A("s_waitcnt vmcnt(0)")
            A("v_readfirstlane_b32 s24, v20")
            A("s_cmp_lt_u32 s24, 8")
            A("s_cbranch_scc1 L_k1_kvpoll")
            st(A, "at2")
            A("s_lshl_b32 s24, s28, 13")
            A("s_add_u32 s25, s35, s24")
            A("s_sub_u32 s25, s25, 0x100000")
            A("s_lshl_b32 s26, s33, 15")
            A("s_add_u32 s24, s24, s26")
            for h in range(2):
                A("s_add_u32 m0, s24, %d" % (32768 + h * 4096))
                A("s_add_u32 s26, s25, %d" % (h * 4096))
                for i in range(4):
                    A("buffer_load_dwordx4 v19, s[16:19], s26 offen offset:%d sc1 lds" % (i * 1024))
            A.label("L_k1_nofetch")
            A("buffer_load_dword v22, v18, s[52:55], s27 offen sc1")
            attn_body(A, "atA", QR, OA, MA, 12, 20, stubs)
            A("s_cmp_lg_u32 s22, 0")
            A("s_cbranch_scc1 L_k1_atdone")
            A("s_cmp_eq_u32 s29, 0")
            A("s_cbranch_scc1 L_k1_atdone")
            st(A, "at3")
            A("s_mov_b32 s22, 1")
            for r in range(6):
                A("s_not_b64 %s, %s" % (s(36 + 2 * r, 2), s(36 + 2 * r, 2)))
            A("s_mov_b32 s24, s20")
            A("s_mov_b32 s20, s21")
            A("s_mov_b32 s21, s24")
            A("v_add_u32 v8, 32768, v12")
            A("v_add_u32 v12, 32768, v13")
            A("v_mov_b32 v13, v8")
            A("s_waitcnt vmcnt(0)")
            A("s_barrier")
            st(A, "at4")
            A("s_branch L_k1_part")
            A.label("L_k1_g2pf")
            A("s_cmp_lt_u32 s28, 4")
            A("s_cbranch_scc1 L_k1_nofetch")
            A("buffer_load_dword v22, v18, s[52:55], s27 offen sc1")
            g2_loader_setup(A)
            A("s_waitcnt vmcnt(0)")
            A("v_readfirstlane_b32 s24, v22")
            A("s_cmp_lt_u32 s24, 16")
            A("s_cbranch_scc1 L_k1_nofetch")
            A("s_mov_b32 s68, 1")
            for sl in range(2):
                g2_dma_w(A, sl)
                g2_dma_a(A, sl)
            A("s_branch L_k1_nofetch")
            for lab, tail, back in stubs:
                A.label(lab)
                for i in tail: A(i)
                A("s_branch %s" % back)
            A.label("L_k1_atdone")
            A("s_lshl_b32 s24, s30, 1")
            A("s_add_u32 s24, s24, s33")
            A("s_add_u32 s24, s24, 112")
            A("s_lshl_b32 s24, s24, 17")
            A("s_add_u32 s50, s50, s24")
            A("s_add_u32 s51, s51, s24")
            A("s_nop 4")
            for q in (2, 3, 0, 1):
                o = OA + 12 * q
                A("v_rcp_f32 v8, %s" % v(o + 8))
                A("s_nop 0")
                for i in range(8):
                    A("v_mul_f32 %s, %s, v8" % (v(o + i), v(o + i)))
                pack(28 + 4 * q, o, o + 4)
                A("buffer_store_dwordx4 %s, v19, s[12:15], %s offen offset:%d sc1" % (v(28 + 4 * q, 4), s(50 + (q >> 1)), (q & 1) * 1024))
            A("s_barrier")
            A("s_cmp_lt_u32 s28, 4")
            A("s_cbranch_scc1 L_g2_q0")
            A("s_cmp_eq_u32 s68, 0")
            A("s_cbranch_scc1 L_g2_q1")
            for sl in range(2, 4):
                g2_dma_w(A, sl)
                g2_dma_a(A, sl)
            A("s_waitcnt vmcnt(20)")
            A("s_branch L_g2_com")
            A.label("L_g2_q1")
            g2_loader_setup(A)
            for sl in range(G2R): g2_dma_w(A, sl)
            A("s_waitcnt vmcnt(20)")
            A("s_branch L_g2_com")
            A.label("L_g2_q0")
            A("s_waitcnt vmcnt(0)")
            A("s_branch L_g2_com")
        else:
            st(A, "epi")
            A("s_mov_b32 s31, 0")
            A("s_mov_b32 s68, 0")
            BR, T = EX + 8, FR0 + 44
            for t in range(7):
                b = CR + 28 + 2 * t
                A("v_lshlrev_b32 %s, 16, %s" % (v(BR + 4 * t), v(b)))
                A("v_and_b32 %s, 0xffff0000, %s" % (v(BR + 4 * t + 1), v(b)))
                A("v_lshlrev_b32 %s, 16, %s" % (v(BR + 4 * t + 2), v(b + 1)))
                A("v_and_b32 %s, 0xffff0000, %s" % (v(BR + 4 * t + 3), v(b + 1)))
            c0 = -2.0 * math.sqrt(2.0 / math.pi) * math.log2(math.e)
            for i in range(2):
                A("v_mov_b32 %s, %s" % (v(8 + i), f32(c0)))
                A("v_mov_b32 %s, %s" % (v(12 + i), f32(c0 * 0.044715)))
                A("v_mov_b32 %s, 1.0" % v(216 + i))
            A("s_mul_i32 s38, s30, 7")
            A("s_lshl_b32 s38, s38, 17")
            A("s_add_u32 s40, s40, s38")
            A("s_add_u32 s41, s41, s38")
            A("s_lshl_b32 s39, s33, 9")
            A("s_add_u32 s39, s39, 0x%x" % (3 << 17))
            A("s_add_u32 s42, s40, s39")
            A("s_add_u32 s43, s41, s39")
            A("s_lshl_b32 s39, s33, 19")
            A("s_add_u32 s40, s40, s39")
            A("s_add_u32 s41, s41, s39")
            A("v_and_b32 v10, 0xf0, v19")
            A("v_and_b32 v2, 16, v1")
            A("v_lshl_add_u32 v10, v2, 6, v10")
            A("v_and_b32 v2, 32, v1")
            A("v_lshl_add_u32 v10, v2, 3, v10")
            def act2(blks, d):
                P = [(g.accr(mb, nb) + i, T + 4 * h + i, mb, nb, i) for h, (mb, nb) in enumerate(blks) for i in (0, 2)]
                for c, t, mb, nb, i in P:
                    A("v_pk_fma_f32 %s, %s, %s, %s" % (v(t, 2), v(CR + 4 * nb + i, 2), v(ND + 2 * mb, 2), v(BR + 4 * nb + i, 2)))
                for c, t, mb, nb, i in P:
                    A("v_pk_fma_f32 %s, %s, %s, %s" % (v(c, 2), v(c, 2), v(EX + 2 * mb, 2), v(t, 2)))
                for c, t, mb, nb, i in P:
                    A("v_pk_mul_f32 %s, %s, %s" % (v(t, 2), v(c, 2), v(c, 2)))
                for c, t, mb, nb, i in P:
                    A("v_pk_fma_f32 %s, %s, v[12:13], v[8:9]" % (v(t, 2), v(t, 2)))
                for c, t, mb, nb, i in P:
                    A("v_pk_mul_f32 %s, %s, %s" % (v(t, 2), v(t, 2), v(c, 2)))
                for i in range(8): A("v_exp_f32 %s, %s" % (v(T + i), v(T + i)))
                for c, t, mb, nb, i in P:
                    A("v_pk_add_f32 %s, %s, v[216:217]" % (v(t, 2), v(t, 2)))
                for i in range(8): A("v_rcp_f32 %s, %s" % (v(T + i), v(T + i)))
                for c, t, mb, nb, i in P:
                    A("v_pk_mul_f32 %s, %s, %s" % (v(c, 2), v(c, 2), v(t, 2)))
                for k_, (c, t, mb, nb, i) in enumerate(P):
                    A("v_cvt_pk_bf16_f32 %s, %s, %s" % (v(d + k_), v(c), v(c + 1)))
            k = 0
            for pr in range(3):
                for mb in range(4):
                    d = T + 8 + 4 * (k % 6); k += 1
                    act2([(mb, 2 * pr), (mb, 2 * pr + 1)], d)
                    A("buffer_store_dwordx4 %s, v19, s[12:15], %s offen offset:%d sc1" % (v(d, 4), s(40 + (mb >> 1)), (mb & 1) * 1024))
                if pr < 2:
                    A("s_add_u32 s40, s40, 0x20000")
                    A("s_add_u32 s41, s41, 0x20000")
            for h in range(2):
                d = T + 8 + 4 * (k % 6); k += 1
                act2([(2 * h, 6), (2 * h + 1, 6)], d)
                A("s_nop 1")
                A("v_permlane16_swap_b32 %s, %s" % (v(d), v(d + 2)))
                A("v_permlane16_swap_b32 %s, %s" % (v(d + 1), v(d + 3)))
                A("buffer_store_dwordx4 %s, v10, s[12:15], %s offen sc1" % (v(d, 4), s(42 + h)))
            A("s_lshl_b32 s27, s29, 11")
            A("s_add_u32 s27, s27, %d" % (16384 + 64))
            A("s_lshr_b32 s26, s30, 2")
            A("s_lshl_b32 s26, s26, 7")
            A("s_add_u32 s26, s26, 256")
            A("v_mov_b32 v22, 0")
            A("s_cmp_lt_u32 s28, 4")
            A("s_cbranch_scc1 L_g2_p0")
            g2_loader_setup(A)
            for sl in range(G2R): g2_dma_w(A, sl)
            A("s_waitcnt vmcnt(16)")
            A("s_branch L_g2_p1")
            A.label("L_g2_p0")
            A("v_mov_b32 v23, 1")
            A("v_mul_lo_u32 v21, v1, s26")
            A("s_waitcnt vmcnt(0)")
            A.label("L_g2_p1")
            A("s_barrier")
            A("s_cmp_lg_u32 s28, 0")
            A("s_cbranch_scc1 L_g2_com")
            A("s_mov_b64 exec, 3")
            A("buffer_atomic_add v23, v21, s[52:55], s27 offen sc1")
            A("s_mov_b64 exec, -1")
    gen_g2f(A)
    A.label("L_k1_done")
    A("s_endpgm")
    kernel_desc(A, name, 256, 96)
    return "; @launch %sgrid=(256,1,1) block=(512,1,1) lds=163840" % (("kernel=%s " % name) if os.environ.get("LIST") else "")

def main2(out):
    A = Asm()
    A.raw('.amdgcn_target "amdgcn-amd-amdhsa--gfx950"')
    ls = [gen_k1(A)]
    hdr = "; generated by dev/kf.py\n" + "\n".join(ls) + "\n"
    open(out, "w").write(hdr + A.text())

if __name__ == "__main__":
    main2(sys.argv[1] if len(sys.argv) > 1 else "cdna_kernels/%s.s" % NAME)
```

```python
from gen import *

STL = os.environ.get("STL", "start,p0,loop,epi").split(",")
def st(A, name):
    if name in STL: stamp(A, STL.index(name))

SCHEDS = {
 "a": {"pre": "W0 A0_0 A0_1 W1", "post": "A1_0 A1_1 W2", -1: "W3", 0: "A2_0 A2_1 W4", 1: "W5 A3_0 S0 S1 S2 S3", 2: "W6 A3_1 S4 S5 S6 S7",
       3: "W7 A4_0", 4: "W8 A4_1", 5: "W9 A5_0", 6: "W10 A5_1", 7: "W11 A6_0"},
 "b": {"pre": "W0 A0_0 A0_1 W1", "post": "A1_0 A1_1 W2 S0 S1 S2 S3", -1: "W3 S4 S5 S6 S7", 0: "A2_0 A2_1 W4", 1: "W5 A3_0", 2: "W6 A3_1",
       3: "W7 A4_0", 4: "W8 A4_1", 5: "W9 A5_0", 6: "W10 A5_1", 7: "W11 A6_0"},
 "c": {"pre": "W0 A0_0 A0_1 W1", "pre2": "S0 S1 S2 S3 S4 S5 S6 S7", "post": "A1_0 A1_1 W2", -1: "W3", 0: "A2_0 A2_1 W4", 1: "W5 A3_0", 2: "W6 A3_1",
       3: "W7 A4_0", 4: "W8 A4_1", 5: "W9 A5_0", 6: "W10 A5_1", 7: "W11 A6_0"},
 "e": {"pre": "W0 A0_0 A0_1 W1", "post": "A1_0 A1_1 W2", -1: "W3", 0: "A2_0 A2_1 W4", 1: "W5 A3_0", 2: "W6 A3_1",
       3: "W7 A4_0 S0 S1 S2 S3", 4: "W8 A4_1 S4 S5 S6 S7", 5: "W9 A5_0", 6: "W10 A5_1", 7: "W11 A6_0"},
 "f": {"pre": "W0 A0_0 A0_1 W1 A1_0 A1_1 W2 W3 A2_0 A2_1", 0: "W4", 1: "W5 A3_0", 2: "W6 A3_1 S0 S1 S2 S3",
       3: "W7 A4_0 S4 S5 S6 S7", 4: "W8 A4_1", 5: "W9 A5_0", 6: "W10 A5_1", 7: "W11 A6_0"},
 "d": {"pre": "W0 A0_0 A0_1 W1", "post": "A1_0 A1_1 W2", -1: "W3", 0: "A2_0 A2_1 W4 S0 S1", 1: "W5 A3_0 S2 S3", 2: "W6 A3_1 S4 S5",
       3: "W7 A4_0 S6 S7", 4: "W8 A4_1", 5: "W9 A5_0", 6: "W10 A5_1", 7: "W11 A6_0"},
}
SCHED = SCHEDS[os.environ.get("SCHED", "a")]
WS_KV, WS_SYNC = 8 * MB_, 48 * MB_
K1_WR, K1_WST, K1_SP = 98304, 14336, 155648

def reduce64(A, x, t, op="v_add_f32"):
    for r in (8, 4, 2, 1):
        A("s_nop 1")
        A("%s_dpp %s, %s, %s row_ror:%d row_mask:0xf bank_mask:0xf" % (op, v(x), v(x), v(x), r))
    xlane_sum(A, x, t, op=op, ror8=False)

def k1_stats(A, T):
    X, a_, b_, m_, q_ = T + 8, T + 24, T + 25, T + 26, T + 27
    for i in range(8):
        A("v_lshlrev_b32 %s, 16, %s" % (v(X + 2 * i), v(T + i)))
        A("v_and_b32 %s, 0xffff0000, %s" % (v(X + 2 * i + 1), v(T + i)))
    A("v_add_f32 %s, %s, %s" % (v(a_), v(X), v(X + 1)))
    A("v_add_f32 %s, %s, %s" % (v(b_), v(X + 2), v(X + 3)))
    for i in range(4, 16, 2):
        A("v_add_f32 %s, %s, %s" % (v(a_), v(a_), v(X + i)))
        A("v_add_f32 %s, %s, %s" % (v(b_), v(b_), v(X + i + 1)))
    A("v_add_f32 %s, %s, %s" % (v(a_), v(a_), v(b_)))
    reduce64(A, a_, b_)
    A("v_mul_f32 %s, %s, %s" % (v(m_), f32(1.0 / 1024), v(a_)))
    for i in range(16):
        A("v_sub_f32 %s, %s, %s" % (v(X + i), v(X + i), v(m_)))
    A("v_mul_f32 %s, %s, %s" % (v(a_), v(X), v(X)))
    A("v_mul_f32 %s, %s, %s" % (v(b_), v(X + 1), v(X + 1)))
    for i in range(2, 16, 2):
        A("v_fmac_f32 %s, %s, %s" % (v(a_), v(X + i), v(X + i)))
        A("v_fmac_f32 %s, %s, %s" % (v(b_), v(X + i + 1), v(X + i + 1)))
    A("v_add_f32 %s, %s, %s" % (v(a_), v(a_), v(b_)))
    reduce64(A, a_, b_)
    A("v_mul_f32 %s, %s, %s" % (v(q_), f32(1.0 / 1024), v(a_)))
    def std(dst, var):
        A("v_mov_b32 %s, %s" % (v(dst), v(var)))
        rnd_bf16(A, dst)
        A("v_add_f32 %s, %s, %s" % (v(dst), f32(1e-5), v(dst)))
        rnd_bf16(A, dst)
        A("v_sqrt_f32 %s, %s" % (v(dst), v(dst)))
        A("s_nop 0")
        rnd_bf16(A, dst)
    s1, mb_, s2, m2 = X, X + 1, X + 2, X + 3
    std(s1, q_)
    A("v_rcp_f32 %s, %s" % (v(T), v(s1)))
    A("v_mov_b32 %s, %s" % (v(mb_), v(m_)))
    rnd_bf16(A, mb_)
    A("v_mul_f32 %s, -%s, %s" % (v(T + 1), v(T), v(mb_)))
    A("v_sub_f32 %s, %s, %s" % (v(m2), v(m_), v(mb_)))
    A("v_mul_f32 %s, %s, %s" % (v(m2), v(m2), v(T)))
    rnd_bf16(A, m2)
    A("v_mul_f32 %s, %s, %s" % (v(q_), v(q_), v(T)))
    A("v_mul_f32 %s, %s, %s" % (v(q_), v(q_), v(T)))
    std(s2, q_)
    A("v_rcp_f32 %s, %s" % (v(s2), v(s2)))
    A("v_fma_f32 %s, %s, %s, %s" % (v(m2), v(m2), v(s1), v(mb_)))
    A("v_mul_f32 %s, %s, %s" % (v(T + 2), v(T), v(s2)))
    A("v_mul_f32 %s, -%s, %s" % (v(T + 3), v(T + 2), v(m2)))

def attn_body(A, tag, Qr, O, M, base, sN, stubs):
    S_, KF, VF, ONES, NINF = 28, 156, 172, 188, 7
    def Sr(j, qb, kb): return S_ + 16 * j + 8 * qb + 4 * kb
    def rd(F, j, off):
        for k in range(2):
            A("ds_read_b128 %s, %s offset:%d" % (v(F + 8 * (j & 1) + 4 * k, 4), v(base), j * 4096 + off + k * 1024))
    def mx(j, qb, kb):
        b, out = Sr(j, qb, kb), []
        if j == 0:
            for r in range(4):
                m = s(36 + 2 * r, 2) if qb == kb else ("s[44:45]" if kb else "s[46:47]")
                out.append("v_cndmask_b32 %s, %s, v7, %s" % (v(b + r), v(b + r), m))
        for i in (0, 2):
            src0 = v(M + qb) if (j == 0 and kb == 0 and i == 0) else v(8 + qb)
            out.append("v_max3_f32 %s, %s, %s, %s" % (v(8 + qb), src0, v(b + i), v(b + i + 1)))
        return out
    def pv(j):
        out = []
        for d in range(3):
            for qb in range(2):
                aop = v(VF + 8 * (j & 1) + 4 * d, 4) if d < 2 else v(ONES, 4)
                c = v(O + 12 * qb + 4 * d, 4)
                out.append("v_mfma_f32_16x16x32_bf16 %s, %s, %s, %s" % (c, aop, v(Sr(j, qb, 0), 4), c))
        return out
    l2, l3 = (A.newlabel(tag + x) for x in "bc")
    rd(KF, 0, 0)
    rd(VF, 0, 2048)
    for j in range(8):
        if j < 7:
            rd(KF, j + 1, 0)
            A("s_waitcnt lgkmcnt(%d)" % (4 if j == 0 else 2))
        else:
            A("s_waitcnt lgkmcnt(0)")
        for qb in range(2):
            for kb in range(2):
                A("v_mfma_f32_16x16x32_bf16 %s, %s, %s, 0" % (v(Sr(j, qb, kb), 4), v(KF + 8 * (j & 1) + 4 * kb, 4), v(Qr + 4 * qb, 4)))
                if j:
                    for i in mx(j - 1, qb, kb): A(i)
        tail = ["s_nop %d" % (5 if j else 7)] + [i for qb in range(2) for kb in range(2) for i in mx(j, qb, kb)]
        if j < 7:
            lab = A.newlabel(tag + "x")
            A("s_cmp_eq_u32 %s, %d" % (s(sN), j + 1))
            A("s_cbranch_scc1 %s" % lab)
            stubs.append((lab, tail, l2))
        else:
            for i in tail: A(i)
    A.label(l2)
    for sw in ("16", "32"):
        A("v_mov_b32 v10, v8")
        A("v_mov_b32 v11, v9")
        A("s_nop 0")
        A("v_permlane%s_swap_b32 v8, v10" % sw)
        A("v_permlane%s_swap_b32 v9, v11" % sw)
        A("v_max_f32 v8, v8, v10")
        A("v_max_f32 v9, v9, v11")
    for qb in range(2):
        A("v_sub_f32 %s, %s, %s" % (v(10 + qb), v(M + qb), v(8 + qb)))
        A("v_mul_f32 %s, s48, %s" % (v(10 + qb), v(10 + qb)))
        A("v_exp_f32 %s, %s" % (v(10 + qb), v(10 + qb)))
        A("v_mov_b32 %s, %s" % (v(M + qb), v(8 + qb)))
        A("v_mul_f32 %s, s48, %s" % (v(8 + qb), v(8 + qb)))
    for qb in range(2):
        for i in range(12):
            A("v_mul_f32 %s, %s, %s" % (v(O + 12 * qb + i), v(O + 12 * qb + i), v(10 + qb)))
    for j in range(8):
        fm = ["v_fma_f32 %s, %s, s48, -%s" % (v(Sr(j, 0, 0) + i), v(Sr(j, 0, 0) + i), v(8 + i // 8)) for i in range(16)]
        ex = ["v_exp_f32 %s, %s" % (v(Sr(j, 0, 0) + i), v(Sr(j, 0, 0) + i)) for i in range(16)]
        cv = ["v_cvt_pk_bf16_f32 %s, %s, %s" % (v(Sr(j, qb, 0) + i), v(Sr(j, qb, 0) + 2 * i), v(Sr(j, qb, 0) + 2 * i + 1)) for qb in range(2) for i in range(4)]
        mm = pv(j - 1) if j else []
        for i in range(4): A(fm[i])
        if j: A("s_waitcnt lgkmcnt(2)")
        for k in range(8):
            if mm and 1 <= k <= 6: A(mm[k - 1])
            A(ex[2 * k]); A(ex[2 * k + 1])
            if k + 2 < 8: A(fm[2 * k + 4]); A(fm[2 * k + 5])
            if k >= 1: A(cv[k - 1])
        A("s_nop 0")
        A(cv[7])
        tail = ["s_waitcnt lgkmcnt(0)", "s_nop 0"] + pv(j)
        if j < 7:
            lab = A.newlabel(tag + "y")
            A("s_cmp_eq_u32 %s, %d" % (s(sN), j + 1))
            A("s_cbranch_scc1 %s" % lab)
            stubs.append((lab, tail, l3))
            rd(VF, j + 1, 2048)
        else:
            for i in tail: A(i)
    A.label(l3)

G2R, G2ST = 4, 32768
PFD = int(os.environ.get("PFD", "0"))
SLP = int(os.environ.get("SLP", "8"))
G2_SP = int(os.environ.get("G2SP", "36"))
def g2_slot(sl): return (sl & 1) * 65536 + (sl >> 1) * G2ST
def g2_dma_w(A, slot):
    for ch in range(2):
        A("s_add_u32 m0, s35, %d" % (g2_slot(slot) + 16384 + ch * 1024))
        A("s_nop 0")
        for i in range(2):
            A("buffer_load_dwordx4 %s, s[8:11], s57 offen offset:%d lds" % (v(24 + ch + 2 * i), i * 2048))
    A("s_add_u32 s57, s57, 0x20000")
    A("s_cmp_eq_u32 s57, 0x%x" % (3584 * 2048))
    A("s_cselect_b32 s57, 0, s57")
def g2_dma_a(A, slot):
    A("s_add_u32 m0, s35, %d" % g2_slot(slot))
    A("s_nop 0")
    for i in range(4):
        A("buffer_load_dwordx4 v19, s[12:15], s56 offen offset:%d lds" % (i * 1024))
    A("s_add_u32 s56, s56, 0x40000")
    A("s_cmp_ge_u32 s56, s58")
    A("s_cselect_b32 s34, s58, 0")
    A("s_sub_u32 s56, s56, s34")
def g2_loader_setup(A):
    A("s_sub_u32 s35, s28, 4")
    A("s_lshr_b32 s56, s35, 1")
    A("s_lshl_b32 s56, s56, 17")
    A("s_lshl_b32 s34, s29, 14")
    A("s_add_u32 s56, s56, s34")
    A("s_and_b32 s34, s30, 4")
    A("s_lshl_b32 s34, s34, 11")
    A("s_add_u32 s56, s56, s34")
    A("s_and_b32 s34, s35, 1")
    A("s_lshl_b32 s34, s34, 12")
    A("s_add_u32 s56, s56, s34")
    A("v_lshrrev_b32 v25, 3, v1")
    A("v_lshlrev_b32 v25, 11, v25")
    A("v_bfe_u32 v21, v1, 4, 2")
    A("v_lshlrev_b32 v21, 1, v21")
    A("v_and_b32 v23, 7, v1")
    A("v_xor_b32 v21, v21, v23")
    A("v_lshl_add_u32 v25, v21, 4, v25")
    A("s_lshl_b32 s34, s35, 15")
    A("s_and_b32 s57, s30, 8")
    A("s_lshl_b32 s57, s57, 7")
    A("s_add_u32 s34, s34, s57")
    A("s_and_b32 s57, s30, 3")
    A("s_lshl_b32 s57, s57, 8")
    A("s_add_u32 s34, s34, s57")
    A("v_add_u32 v24, s34, v25")
    A("v_add_u32 v25, %d, v24" % 128)
    A("v_add_u32 v26, %d, v24" % (16384 - 2048))
    A("v_add_u32 v27, %d, v24" % (16384 + 128 - 2048))
    A("s_lshr_b32 s34, s30, 2")
    A("s_mul_i32 s34, s34, 14")
    A("s_mul_i32 s57, s31, %d" % G2_SP)
    A("s_add_u32 s57, s57, s34")
    A("s_cmp_ge_u32 s57, 56")
    A("s_cselect_b32 s34, 56, 0")
    A("s_sub_u32 s57, s57, s34")
    A("s_add_u32 s59, s56, 0x%x" % (112 * 131072))
    A("s_lshl_b32 s34, s57, 18")
    A("s_add_u32 s56, s56, s34")
    A("s_lshl_b32 s57, s57, 17")
    A("s_lshl_b32 s35, s35, 12")
    srd(A, 8, 90, 3584 * 2048)
    A("s_mov_b32 s58, 0x%x" % (112 * 131072))

def gen_g2f(A):
    R, KS, ST = G2R, 2, G2ST
    SP, SQ = G2_SP, 72 - G2_SP
    assert SP % 4 == 0 and SP <= 48
    NS = len(STL) + 2
    A.label("L_g2_com")
    st(A, "k1e")
    A("v_mov_b32 v21, 0")
    A("s_cmp_eq_u32 s31, 0")
    A("s_cselect_b32 s44, %d, %d" % (SP // R - 1, SQ // R - 1))
    A("s_cmp_ge_u32 s28, 4")
    A("s_cbranch_scc1 L_g2_loader")
    A("s_add_u32 s23, s27, 128")
    A("s_load_dwordx2 s[4:5], s[0:1], 0")
    A("s_load_dwordx4 s[24:27], s[0:1], 56")
    A("s_lshr_b32 s34, s30, 2")
    A("s_mul_i32 s34, s34, 14")
    A("s_mul_i32 s36, s31, %d" % SP)
    A("s_add_u32 s36, s36, s34")
    A("s_add_u32 s36, s36, 4")
    A("s_cmp_ge_u32 s36, 56")
    A("s_cselect_b32 s34, 56, 0")
    A("s_sub_u32 s36, s36, s34")
    A("s_lshl_b32 s36, s36, 17")
    srd(A, 12, 90, 3584 * 2048)
    A("s_lshl_b32 s29, s29, 1")
    A("s_bfe_u32 s34, s30, 0x10002")
    A("s_add_u32 s29, s29, s34")
    A("s_lshr_b32 s34, s30, 3")
    A("s_lshl_b32 s34, s34, 2")
    A("s_and_b32 s30, s30, 3")
    A("s_add_u32 s30, s30, s34")
    A("v_mov_b32 v3, v19")
    A("v_mov_b32 v18, 0")
    A("v_lshrrev_b32 v20, 2, v1")
    A("v_lshlrev_b32 v20, 11, v20")
    A("v_and_b32 v7, 3, v1")
    A("v_lshl_add_u32 v20, v7, 6, v20")
    A("s_lshl_b32 s34, s28, 15")
    A("s_lshl_b32 s37, s30, 8")
    A("s_add_u32 s34, s34, s37")
    A("v_add_u32 v20, s34, v20")
    touch = ["buffer_load_dword v18, v20, s[12:15], s36 offen", "s_add_u32 s36, s36, 0x20000",
             "s_cmp_eq_u32 s36, 0x%x" % (3584 * 2048), "s_cselect_b32 s36, 0, s36"] if PFD else []
    for i in range(PFD - 4):
        for t in touch: A(t)
    assert PFD == 0 or (PFD % 4 == 0 and PFD < 56 - SP)
    A("s_cmp_eq_u32 s31, 0")
    A("s_cselect_b32 s37, -1, %d" % (3 + PFD // 4))
    A("s_and_b32 s32, s28, 1")
    A("s_lshr_b32 s33, s28, 1")
    A("s_lshl_b32 s34, s32, 12")
    A("v_add_u32 v8, s34, v3")
    A("v_add_u32 v9, 0x10000, v8")
    A("v_lshrrev_b32 v6, 5, v1")
    A("v_lshlrev_b32 v6, 11, v6")
    A("v_bfe_u32 v7, v1, 2, 3")
    A("v_lshl_add_u32 v6, v7, 7, v6")
    A("v_bfe_u32 v7, v1, 3, 2")
    A("v_lshl_add_u32 v6, v7, 5, v6")
    A("v_and_b32 v7, 3, v1")
    A("v_lshl_add_u32 v6, v7, 3, v6")
    A("s_lshl_b32 s34, s33, 10")
    A("s_add_u32 s34, s34, 16384")
    A("v_add_u32 v10, s34, v6")
    for t in range(1, 4):
        A("v_xor_b32 %s, %d, v10" % (v(10 + t), 32 * t))
    for t in range(4):
        A("v_add_u32 %s, 0x10000, %s" % (v(14 + t), v(10 + t)))
    ACC, FR0, PT = 24, 88, 152
    A("v_and_b32 v19, 15, v1")
    A("v_lshlrev_b32 v19, 11, v19")
    A("v_lshrrev_b32 v7, 4, v1")
    A("v_lshlrev_b32 v7, 3, v7")
    A("s_lshl_b32 s38, s30, 8")
    A("s_lshl_b32 s39, s33, 7")
    A("s_add_u32 s38, s38, s39")
    A("s_lshl_b32 s39, s29, 18")
    A("s_lshl_b32 s47, s32, 17")
    A("s_add_u32 s39, s39, s47")
    A("s_add_u32 s39, s39, s38")
    A("s_lshl_b32 s48, s29, 3")
    A("s_add_u32 s48, s48, s30")
    A("s_lshl_b32 s48, s48, 2")
    A("s_add_u32 s48, s48, s28")
    A("s_lshl_b32 s49, s48, 5")
    A("s_add_u32 s49, s49, 0x%x" % (WS_FLAG - WS_PART))
    A("s_lshl_b32 s48, s48, 14")
    srd(A, 8, 6, WS_FLAG - WS_PART + 16384, WS_PART)
    def read_fn(slot, u, st_):
        hi, base = slot & 1, (slot >> 1) * ST
        xs = [["ds_read_b128 %s, %s offset:%d" % (v(g.xf(st_, mb), 4), v(8 + hi), base + u * 8192 + mb * 1024)] for mb in range(4)]
        ws = []
        for t in range(4):
            for j in range(2):
                ws.append(["ds_read_b64_tr_b16 %s, %s offset:%d" % (v(g.wf(st_, t) + 2 * j, 2), v(10 + 4 * hi + t), base + u * 8192 + j * 4096)])
        return xs[:1] + ws + xs[1:]
    g = Gemm(A, "g2", 4, 4, KS, R, 3 * R, ACC, FR0, read_fn, lambda sl: [touch], 0, cnt=44, rd_last=11)
    for i in range(64):
        A("v_mov_b32 %s, 0" % v(ACC + i))
    A("v_lshrrev_b32 v23, 4, v1")
    A("v_and_b32 v6, 1, v23")
    A("v_lshlrev_b32 v6, 5, v6")
    A("v_lshrrev_b32 v23, 1, v23")
    A("v_lshl_add_u32 v6, v23, 4, v6")
    A("v_add_u32 v6, v6, v19")
    A("s_cmp_lg_u32 s31, 0")
    A("s_cbranch_scc1 L_g2_zero")
    A("s_waitcnt lgkmcnt(0)")
    srd(A, 16, 4, 4 * MB_)
    srd(A, 40, 24, 2048)
    for t in range(4):
        A("buffer_load_dwordx2 %s, v7, s[40:43], s38 offen offset:%d" % (v(PT + 32 + 2 * t, 2), t * 32))
    for mb in range(4):
        A("s_add_u32 s47, s39, %d" % (mb * 32768))
        for h in range(2):
            A("buffer_load_dwordx4 %s, v6, s[16:19], s47 offen offset:%d" % (v(PT + 8 * mb + 4 * h, 4), h * 64))
    A("s_waitcnt vmcnt(0)")
    for t in range(4):
        b, bb = PT + 32 + 2 * t, PT + 40 + 4 * t
        A("v_lshlrev_b32 %s, 16, %s" % (v(bb), v(b)))
        A("v_and_b32 %s, 0xffff0000, %s" % (v(bb + 1), v(b)))
        A("v_lshlrev_b32 %s, 16, %s" % (v(bb + 2), v(b + 1)))
        A("v_and_b32 %s, 0xffff0000, %s" % (v(bb + 3), v(b + 1)))
    for d in range(PT, PT + 32, 4):
        A("v_permlane16_swap_b32 %s, %s" % (v(d), v(d + 2)))
        A("v_permlane16_swap_b32 %s, %s" % (v(d + 1), v(d + 3)))
    for mb in range(4):
        for t in range(4):
            c, x, bb = g.accr(mb, t), PT + 8 * mb + 2 * t, PT + 40 + 4 * t
            A("v_lshlrev_b32 %s, 16, %s" % (v(c), v(x)))
            A("v_and_b32 %s, 0xffff0000, %s" % (v(c + 1), v(x)))
            A("v_lshlrev_b32 %s, 16, %s" % (v(c + 2), v(x + 1)))
            A("v_and_b32 %s, 0xffff0000, %s" % (v(c + 3), v(x + 1)))
            for i in range(0, 4, 2):
                A("v_pk_add_f32 %s, %s, %s" % (v(c + i, 2), v(c + i, 2), v(bb + i, 2)))
    A.label("L_g2_zero")
    g.period(-1, R - 1, True, False, None, first=True)
    st(A, "g0")
    A("s_lshl_b32 s50, s28, 1")
    A("s_add_u32 s50, s50, s31")
    A("s_cmp_lg_u32 s50, 1")
    A("s_cbranch_scc1 L_g2_loop")
    A("v_mov_b32 v22, 1")
    A("s_mov_b64 exec, 1")
    A("buffer_atomic_add v22, v21, s[52:55], s23 offen sc1")
    A("s_mov_b64 exec, -1")
    A.label("L_g2_loop")
    for p in range(R):
        g.period(p, p, True, True, None)
    A("s_sub_u32 s44, s44, 1")
    if PFD:
        A("s_cmp_eq_u32 s44, s37")
        A("s_cselect_b32 s12, s92, s12")
        A("s_cselect_b32 s13, s93, s13")
        A("s_cselect_b32 s14, 0x200000, s14")
        A("s_cselect_b32 s36, 0, s36")
    A("s_waitcnt vmcnt(0)")
    A("v_readfirstlane_b32 s50, v18")
    A("buffer_load_dword v18, v21, s[8:11], s49 offen sc1")
    A("s_cmp_lg_u32 s44, 0")
    A("s_cbranch_scc1 L_g2_loop")
    A("s_cmp_lg_u32 s31, 0")
    A("s_cbranch_scc1 L_g2_poll")
    A("s_mov_b32 s50, 1")
    A("s_branch L_g2_np0")
    def fetch():
        for q in range(4):
            A("s_add_u32 s47, s48, %d" % (q * 4096))
            for i in range(4):
                A("buffer_load_dwordx4 %s, v3, s[8:11], s47 offen offset:%d sc1" % (v(PT + 16 * q + 4 * i, 4), i * 1024))
    A.label("L_g2_poll")
    st(A, "gp0")
    A("s_cmp_eq_u32 s50, 0")
    A("s_cbranch_scc1 L_g2_np0")
    fetch()
    A.label("L_g2_np0")
    for p in range(2):
        g.period(p, p, True, False, None)
    A("s_cmp_lg_u32 s50, 0")
    A("s_cbranch_scc1 L_g2_np1")
    A("s_waitcnt vmcnt(0)")
    A("v_readfirstlane_b32 s50, v18")
    A("s_cmp_eq_u32 s50, 0")
    A("s_cbranch_scc1 L_g2_np1")
    fetch()
    A.label("L_g2_np1")
    g.period(2, 2, True, False, None)
    A("s_waitcnt lgkmcnt(0)")
    g.period(R - 1, R - 1, False, False, None, barrier=False)
    A("s_cmp_lg_u32 s50, 0")
    A("s_cbranch_scc1 L_g2_np2")
    A.label("L_g2_poll1")
    A("buffer_load_dword v18, v21, s[8:11], s49 offen sc1")
    A("s_waitcnt vmcnt(0)")
    A("v_readfirstlane_b32 s50, v18")
    A("s_cmp_lg_u32 s50, 0")
    A("s_cbranch_scc1 L_g2_poll2")
    A("s_sleep 2")
    A("s_branch L_g2_poll1")
    A.label("L_g2_poll2")
    fetch()
    A.label("L_g2_np2")
    st(A, "g1")
    A("s_nop 7")
    A("s_cmp_lg_u32 s31, 0")
    A("s_cbranch_scc1 L_g2_fin")
    for mb in range(4):
        A("s_add_u32 s47, s48, %d" % (mb * 4096))
        for i in range(4):
            A("buffer_store_dwordx4 %s, v3, s[8:11], s47 offen offset:%d sc1" % (v(ACC + 16 * mb + 4 * i, 4), i * 1024))
    A("v_mov_b32 v22, 1")
    A("s_waitcnt vmcnt(0)")
    A("s_mov_b64 exec, 1")
    A("buffer_store_dword v22, v21, s[8:11], s49 offen sc1")
    A("s_mov_b64 exec, -1")
    stamp_out(A, 0, NS, 6, "s28")
    A("s_endpgm")
    A.label("L_g2_fin")
    srd(A, 16, 26, 4 * MB_)
    for mb in range(4):
        A("s_waitcnt vmcnt(%d)" % (12 - 4 * mb + 2 * mb))
        for i in range(0, 16, 2):
            A("v_pk_add_f32 %s, %s, %s" % (v(ACC + 16 * mb + i, 2), v(ACC + 16 * mb + i, 2), v(PT + 16 * mb + i, 2)))
        A("s_add_u32 s47, s39, %d" % (mb * 32768))
        for h in range(2):
            d = FR0 + 8 * mb + 4 * h
            for t in range(2):
                c = g.accr(mb, 2 * h + t)
                A("v_cvt_pk_bf16_f32 %s, %s, %s" % (v(d + 2 * t), v(c), v(c + 1)))
                A("v_cvt_pk_bf16_f32 %s, %s, %s" % (v(d + 2 * t + 1), v(c + 2), v(c + 3)))
            A("s_nop 1")
            A("v_permlane16_swap_b32 %s, %s" % (v(d), v(d + 2)))
            A("v_permlane16_swap_b32 %s, %s" % (v(d + 1), v(d + 3)))
            A("buffer_store_dwordx4 %s, v6, s[16:19], s47 offen offset:%d%s" % (v(d, 4), h * 64, OUTSC))
    stamp_out(A, 0, NS, 6, "s28")
    A("s_endpgm")
    A.label("L_g2_loader")
    if "lprio" in OPT: A("s_setprio 3")
    A("s_add_u32 s38, s27, s26")
    A("s_add_u32 s39, s27, 128")
    A("s_cmp_eq_u32 s31, 0")
    A("s_cselect_b32 s38, s38, s27")
    A("s_cselect_b32 s39, s27, s39")
    A("s_cselect_b32 s41, 4, 16")
    A("s_cselect_b32 s46, 10, %d" % (52 - SP))
    A("s_cmp_eq_u32 s68, 0")
    A("s_cbranch_scc1 L_g2_hchk")
    st(A, "g0")
    A("v_mov_b32 v22, 0")
    A("s_waitcnt vmcnt(16)")
    A("s_barrier")
    A("s_branch L_g2_lloop")
    A.label("L_g2_hpoll")
    A("s_sleep %d" % SLP)
    A("buffer_load_dword v22, v21, s[52:55], s38 offen sc1")
    A("s_waitcnt vmcnt(0)")
    A.label("L_g2_hchk")
    A("v_readfirstlane_b32 s40, v22")
    A("s_cmp_lt_u32 s40, s41")
    A("s_cbranch_scc1 L_g2_hpoll")
    st(A, "g0")
    A("v_mov_b32 v22, 0")
    for sl in range(R):
        g2_dma_a(A, sl)
    A("s_waitcnt vmcnt(12)")
    A("s_barrier")
    outl = []
    def dma(slot):
        g2_dma_w(A, slot)
        g2_dma_a(A, slot)
        l1, l2, l3, l4 = (A.newlabel("g2o") for _ in range(4))
        A("s_sub_u32 s46, s46, 1")
        A("s_and_b32 s34, s46, 0xfffffffb")
        A("s_cbranch_scc0 %s" % l1)
        A.label(l2)
        outl.append((l1, l2, l3, l4))
    for p in range(R):
        A("s_waitcnt vmcnt(%d)" % (8, 12, 16, 16)[p])
        A("s_barrier")
        dma(p)
    A("s_sub_u32 s44, s44, 1")
    A.label("L_g2_lloop")
    for p in range(R):
        A("s_waitcnt vmcnt(%d)" % (8 * (R - 2)))
        A("s_barrier")
        dma(p)
    A("s_sub_u32 s44, s44, 1")
    A("s_cmp_lg_u32 s44, 0")
    A("s_cbranch_scc1 L_g2_lloop")
    for p in range(R - 1):
        A("s_waitcnt vmcnt(%d)" % (8 * (R - 2 - p)))
        A("s_barrier")
    for nm in ("g1",): st(A, nm)
    stamp_out(A, 0, NS, 6, "s28")
    A("s_endpgm")
    for l1, l2, l3, l4 in outl:
        A.label(l1)
        A("s_cmp_eq_u32 s46, 0")
        A("s_cbranch_scc1 %s" % l3)
        A("buffer_load_dword v22, v21, s[52:55], s39 offen sc1")
        A("s_branch %s" % l2)
        A.label(l4)
        A("s_sleep %d" % SLP)
        A("buffer_load_dword v22, v21, s[52:55], s39 offen sc1")
        A("s_waitcnt vmcnt(0)")
        A.label(l3)
        A("v_readfirstlane_b32 s40, v22")
        A("s_cmp_lt_u32 s40, 16")
        A("s_cbranch_scc1 %s" % l4)
        st(A, "gp0")
        A("s_cmp_eq_u32 s31, 0")
        A("s_cbranch_scc1 %s" % l2)
        srd(A, 8, 92, 1024 * 2048)
        A("s_mov_b32 s57, 0")
        A("s_mov_b32 s56, s59")
        A("s_mov_b32 s58, -1")
        A("s_branch %s" % l2)

def gen_k1(A):
    name = NAME + "_kernel"
    kernel_begin(A, name)
    A("s_cmp_ge_u32 s2, 256")
    A("s_cbranch_scc1 L_k1_done")
    st(A, "start")
    A("s_load_dwordx4 s[20:23], s[0:1], 0")
    A("s_load_dwordx4 s[24:27], s[0:1], 32")
    A("s_load_dwordx4 s[4:7], s[0:1], 72")
    A("s_load_dwordx2 s[90:91], s[0:1], 48")
    A("s_load_dwordx2 s[92:93], s[0:1], 16")
    A("v_and_b32 v1, 63, v0")
    A("v_lshrrev_b32 v2, 6, v0")
    A("v_lshlrev_b32 v19, 4, v1")
    A("v_readfirstlane_b32 s28, v2")
    A("s_and_b32 s29, s2, 1")
    A("s_lshl_b32 s29, s29, 2")
    A("s_bfe_u32 s30, s2, 0x20003")
    A("s_add_u32 s29, s29, s30")
    A("s_bfe_u32 s30, s2, 0x20001")
    A("s_lshl_b32 s30, s30, 2")
    A("s_lshr_b32 s31, s2, 6")
    A("s_add_u32 s30, s30, s31")
    A("s_and_b32 s32, s28, 3")
    A("s_lshr_b32 s33, s28, 2")
    if "nomir" not in OPT:
        A("s_mul_i32 s34, s33, 7")
        A("s_xor_b32 s32, s32, s34")
    A("s_lshl_b32 s31, s2, 3")
    A("s_add_u32 s31, s31, s28")
    A("s_lshl_b32 s34, s31, 11")
    A("s_waitcnt lgkmcnt(0)")
    st(A, "karg")
    srd(A, 8, 20, 4 * MB_)
    TS = 160
    A("buffer_load_dwordx4 %s, v19, s[8:11], s34 offen" % v(TS, 4))
    A("buffer_load_dwordx4 %s, v19, s[8:11], s34 offen offset:1024" % v(TS + 4, 4))
    A("v_lshrrev_b32 v3, 3, v1")
    A("v_lshlrev_b32 v3, 11, v3")
    A("v_and_b32 v7, 7, v1")
    A("v_lshrrev_b32 v2, 4, v1")
    A("v_xor_b32 v7, v7, v2")
    A("v_lshl_add_u32 v3, v7, 4, v3")
    A("v_xor_b32 v4, 64, v3")
    A("v_add_u32 v4, %d, v4" % (8 * 2048 - 1024))
    A("s_lshl_b32 s36, s29, 19")
    A("s_lshl_b32 s34, s28, 16")
    A("s_add_u32 s36, s36, s34")
    A("s_lshl_b32 s46, s28, 12")
    A("s_mov_b32 s37, 0")
    A("s_lshl_b32 s35, s28, 11")
    A("s_add_u32 s35, s35, %d" % K1_WR)
    w_chunk(A, 5, 1, 7)
    A("v_lshrrev_b32 v6, 4, v1")
    A("v_lshlrev_b32 v6, 3, v6")
    A("v_bfe_u32 v7, v1, 2, 2")
    A("v_add_u32 v6, v6, v7")
    A("s_bitcmp1_b32 s2, 5")
    A("s_cbranch_scc1 L_k1_w1")
    ACC = 20
    CSO = 65536
    for typ in ("qkv", "w1"):
        NB = 6 if typ == "qkv" else 7
        FR0 = ACC + 16 * NB
        EX = FR0 + 8 * (4 + NB)
        rowb = 6144 if typ == "qkv" else 7168
        SL, SD, CR = 224, 220, FR0
        if typ == "w1":
            A.label("L_k1_w1")
        if typ == "qkv":
            srd(A, 12, 22, 1024 * 6144)
            A("s_cmp_ge_u32 s28, 3")
            A("s_cselect_b32 s38, 1, 0")
            A("s_mul_i32 s39, s38, 3")
            A("s_sub_u32 s39, s28, s39")
            A("s_lshl_b32 s39, s39, 11")
            A("s_lshl_b32 s40, s30, 1")
            A("s_add_u32 s40, s40, s38")
            A("s_lshl_b32 s40, s40, 6")
            A("s_add_u32 s39, s39, s40")
        else:
            srd(A, 12, 24, 1024 * 7168)
            A("s_mul_i32 s39, s30, 448")
            A("s_lshl_b32 s40, s28, 6")
            A("s_add_u32 s39, s39, s40")
        A("s_movk_i32 s40, %d" % rowb)
        A("v_mul_lo_u32 v6, v6, s40")
        A("v_add3_u32 v5, v5, v6, s39")
        A("v_add_u32 v6, %d, v5" % (4 * rowb - 1024))
        A("s_movk_i32 s40, 7168")
        A("s_movk_i32 s49, 0x3f80")
        g = Gemm(A, "k1", 4, NB, 1, 4, 32, ACC, FR0, None, None, 0, swap_fn=(lambda nb: nb >= 4) if typ == "qkv" else None)
        def reads(stage_par, wslot, st, NB=NB, g=g):
            xs = [["ds_read_b128 %s, %s offset:%d" % (v(g.xf(st, mb), 4), v(8 + 2 * (mb >> 1) + stage_par), (mb & 1) * 2048)] for mb in range(4)]
            ws = []
            for t in range(NB):
                b, off = (16 + (t & 1), (t >> 1) * 2048) if t < 6 else (0, 0)
                for j in range(2):
                    ws.append(["ds_read_b64_tr_b16 %s, %s offset:%d" % (v(g.wf(st, t) + 2 * j, 2), v(b), wslot * K1_WST + off + j * 1024)])
            return xs[:1] + ws + xs[1:]
        for role in (0, 1):
            ops = []
            def a_half(h, tag):
                ops.extend([tag, tag])
                if h == 0:
                    return [["s_mov_b32 m0, s46", "s_nop 0", "buffer_load_dwordx4 v3, s[8:11], s36 offen lds"],
                            ["buffer_load_dwordx4 v4, s[8:11], s36 offen offset:1024 lds", "s_add_u32 s34, s36, 32768"]]
                return [["s_add_u32 m0, s46, 2048", "s_add_u32 s36, s36, 128", "buffer_load_dwordx4 v3, s[8:11], s34 offen lds"],
                        ["buffer_load_dwordx4 v4, s[8:11], s34 offen offset:1024 lds", "s_add_u32 s46, s46, 32768",
                         "s_cmp_ge_u32 s46, 98304", "s_cselect_b32 s38, 98304, 0", "s_sub_u32 s46, s46, s38"]]
            def w_st(slot, tag, role=role, rowb=rowb):
                if role: return []
                ops.extend([tag, tag])
                return [["s_add_u32 m0, s35, %d" % (slot * K1_WST), "s_nop 0", "buffer_load_dwordx4 v5, s[12:15], s37 offen lds"],
                        ["buffer_load_dwordx4 v6, s[12:15], s37 offen offset:1024 lds", "s_add_u32 s37, s37, %d" % (32 * rowb)]]
            def emit(fs):
                for f in fs:
                    for i in f: A(i)
            def younger(tags):
                last = max([i for i, t in enumerate(ops) if t in tags] + [-1])
                return len(ops) - 1 - last
            if role == 0:
                A("s_cmp_ge_u32 s28, %d" % NB)
                A("s_cbranch_scc1 L_k1_%s_role1" % typ)
            else:
                A.label("L_k1_%s_role1" % typ)
            ops.extend(["row", "row"])
            def item(t):
                if t[0] == "W": return w_st(int(t[1:]) & 3, t)
                if t[0] == "A": return a_half(int(t[-1]), t[:-2])
                i = int(t[1:])
                ops.append("pf")
                return [["buffer_load_dwordx4 %s, v18, s[16:19], s41 offen" % v(SL + 4 * i, 4), "s_add_u32 s41, s41, s42"]]
            def items(key):
                return [f for t in SCHED.get(key, "").split() for f in item(t)]
            emit(items("pre"))
            A("s_cmp_lt_u32 s2, 96")
            A("s_cselect_b32 s16, s22, s24")
            A("s_cselect_b32 s17, s23, s25")
            A("s_cselect_b32 s38, 6144, s40")
            A("s_cselect_b32 s39, 0, 96")
            A("s_lshl_b32 s18, s38, 10")
            A("s_cmp_ge_u32 s2, 208")
            A("s_cselect_b32 s18, 0, s18")
            A("s_mov_b32 s19, 0x00020000")
            A("s_sub_u32 s39, s2, s39")
            A("s_and_b32 s41, s39, 1")
            A("s_lshl_b32 s41, s41, 3")
            A("s_add_u32 s41, s41, s28")
            A("s_lshl_b32 s41, s41, 6")
            A("s_mul_i32 s41, s41, s38")
            A("s_lshr_b32 s39, s39, 1")
            A("s_lshl_b32 s39, s39, 7")
            A("s_add_u32 s41, s41, s39")
            A("v_lshrrev_b32 v18, 3, v1")
            A("v_mul_lo_u32 v18, v18, s38")
            A("v_and_b32 v2, 7, v1")
            A("v_lshl_add_u32 v18, v2, 4, v18")
            A("s_lshl_b32 s42, s38, 3")
            emit(items("pre2"))
            A("v_and_b32 v2, 15, v1")
            A("v_and_b32 v7, 1, v1")
            A("v_lshlrev_b32 v7, 4, v7")
            A("v_lshlrev_b32 v7, v7, s49")
            A("v_lshrrev_b32 v2, 1, v2")
            for i in range(4):
                A("v_cmp_eq_u32 vcc, %d, v2" % i)
                A("v_cndmask_b32 %s, 0, v7, vcc" % v(12 + i))
            A("v_and_b32 v2, 15, v1")
            A("v_lshlrev_b32 v8, 7, v2")
            A("v_lshrrev_b32 v2, 1, v2")
            A("v_lshrrev_b32 v7, 4, v1")
            A("v_xor_b32 v2, v2, v7")
            A("v_lshl_add_u32 v2, v2, 4, v8")
            A("s_lshl_b32 s38, s32, 12")
            A("s_sub_u32 s39, %d, s38" % (7 * 4096))
            A("v_add_u32 v8, s38, v2")
            A("v_add_u32 v10, s39, v2")
            A("v_xor_b32 v9, 64, v8")
            A("v_xor_b32 v11, 64, v10")
            tr_base(A, 0, 1, 7)
            A("s_mul_i32 s40, s33, %d" % ((3 if typ == "qkv" else 4) * 2048))
            A("s_add_u32 s40, s40, %d" % K1_WR)
            A("v_add_u32 v16, s40, v0")
            A("v_xor_b32 v17, 32, v16")
            if typ == "w1":
                A("v_and_b32 v0, 0xffffffe7, v0")
                A("v_and_b32 v7, 1, v1")
                A("v_lshlrev_b32 v7, 5, v7")
                A("v_xor_b32 v0, v0, v7")
                A("v_and_b32 v7, 2, v1")
                A("v_lshl_add_u32 v0, v7, 2, v0")
                A("s_lshl_b32 s40, s33, 4")
                A("s_add_u32 s40, s40, %d" % (K1_WR + 3 * 2048))
                A("v_add_u32 v0, s40, v0")
            for i in range(4):
                A("v_mov_b32 %s, 0" % v(20 + i))
            A("s_mov_b32 s47, 0")
            A("s_mov_b32 s50, 32768")
            A("s_mov_b32 s51, 32768")
            srd(A, 52, 6, 131072, WS_SYNC)
            srd(A, 56, 4, 256)
            st(A, "issued")
            A("s_waitcnt vmcnt(%d)" % younger(["row"]))
            st(A, "row")
            k1_stats(A, TS)
            st(A, "stats")
            for i in range(1, 4):
                A("v_cmp_eq_u32 vcc, %d, v1" % i)
                A("v_cndmask_b32 %s, %s, %s, vcc" % (v(TS), v(TS), v(TS + i)))
            A("v_lshlrev_b32 v2, 13, v1")
            A("s_lshl_b32 s38, s31, 2")
            A("s_add_u32 s39, s38, 32768")
            A("s_lshl_b32 s38, s31, 4")
            A("s_mov_b64 exec, 15")
            A("buffer_store_dword %s, v2, s[52:55], s39 offen sc1" % v(TS))
            A("s_mov_b64 exec, 1")
            A("buffer_store_dwordx4 v[20:23], v20, s[52:55], s38 offen sc1")
            A("s_mov_b64 exec, -1")
            ops.extend(["st"] * 2)
            emit(items("post"))
            def period(p, vm, do_a, do_w, rd=None, extra=None, g=g, NB=NB):
                n = 4 * NB
                A("s_waitcnt vmcnt(%d) lgkmcnt(0)" % vm)
                A("s_barrier")
                if extra: extra()
                if rd is None:
                    rd = reads((p + 1) & 1, (p + 1) & 3, (p + 1) & 1)
                if p < 0:
                    emit(rd + items(-1))
                    return
                if do_a == "sched":
                    dm = items(p)
                else:
                    dm = (w_st(p & 3, "W%d" % (p + 4)) if do_w else []) + (a_half(1 - (p & 1), "A%d" % ((p + 5) // 2)) if do_a else [])
                if p & 1 == 0:
                    upd = ["v_add_u32 v8, s50, v8", "v_add_u32 v10, s50, v10"]
                else:
                    upd = ["v_add_u32 v9, s50, v9", "v_add_u32 v11, s50, v11", "s_add_u32 s47, s47, s50",
                           "s_cmp_eq_u32 s47, 65536", "s_cselect_b32 s50, 0xffff0000, s51"]
                slots = [[] for _ in range(n)]
                for i, f in enumerate(rd):
                    slots[(i * (n - 4)) // len(rd)].append(f)
                for i, f in enumerate(dm):
                    slots[min(((2 * i + 1) * n) // (2 * len(dm)), n - 1)].append(f)
                slots[n - 2].append(upd)
                for i, m in enumerate(g.mfmas(p & 1)):
                    A(m if p else m[:m.rindex(",")] + ", 0")
                    for f in slots[i]:
                        for ins in f: A(ins)
            L = 2 if role else 4
            period(-1, younger(["A0", "W0"]), False, False)
            st(A, "p0")
            def cs_mfma():
                for i in range(8):
                    A("v_mfma_f32_16x16x32_bf16 %s, v[12:15], %s, %s" % (v(SD, 4), v(SL + 4 * i, 4), v(SD, 4) if i else "0"))
                A("s_lshl_b32 s38, s28, 10")
                A("s_add_u32 s38, s38, %d" % K1_SP)
                A("v_add_u32 v2, s38, v19")
            def cs_red():
                if True:
                    lab = A.newlabel("csr")
                    A("s_cmp_lg_u32 s28, 7")
                    A("s_cbranch_scc1 %s" % lab)
                    A("v_lshrrev_b32 v2, 3, v1")
                    A("v_lshlrev_b32 v2, 4, v2")
                    A("v_bfe_u32 v7, v1, 2, 1")
                    A("v_lshl_add_u32 v2, v7, 8, v2")
                    A("v_and_b32 v7, 3, v1")
                    A("v_lshl_add_u32 v2, v7, 2, v2")
                    A("v_add_u32 v2, %d, v2" % K1_SP)
                    for i in range(16):
                        A("ds_read_b32 %s, v2 offset:%d" % (v(SL + i), (i >> 1) * 1024 + (i & 1) * 128))
                    A("s_lshr_b32 s38, s2, 1")
                    A("s_lshl_b32 s38, s38, 8")
                    A("s_and_b32 s39, s2, 1")
                    A("s_mul_i32 s39, s39, 32768")
                    A("s_add_u32 s38, s38, s39")
                    A("s_add_u32 s38, s38, %d" % CSO)
                    A("v_lshlrev_b32 v2, 2, v1")
                    A("s_waitcnt lgkmcnt(0)")
                    for st in (8, 4, 2, 1):
                        for i in range(st):
                            A("v_add_f32 %s, %s, %s" % (v(SL + i), v(SL + i), v(SL + i + st)))
                    A("buffer_store_dword %s, v2, s[52:55], s38 offen sc1" % v(SL))
                    A.label(lab)
            for p in range(8):
                need = ["W%d" % (p + 1), "A%d" % ((p + 1) // 2)] + (["pf", "st"] if p == 6 else [])
                period(p, younger(need), "sched", True, extra=cs_mfma if p == 6 else cs_red if (p == 7 and role) else None)
                if p == 6: A("ds_write_b128 v2, %s" % v(SD, 4))
                if p == 3: st(A, "p4")
            assert younger(["W9", "A4"]) >= 2 * L or role
            lab = A.newlabel("k1loop")
            A("s_mov_b32 s44, 5")
            A.label(lab)
            for p in range(4, 8):
                period(p, 2 * L, True, True)
            if role == 1:
                l2 = A.newlabel("sig")
                A("s_lshl_b32 s38, s44, 3")
                A("s_add_u32 s38, s38, s28")
                A("s_cmp_lg_u32 s38, %d" % (5 * 8 + 7))
                A("s_cbranch_scc1 %s" % l2)
                A("v_mov_b32 v12, 1")
                A("v_mov_b32 v13, 0")
                A("s_mov_b64 exec, 1")
                A("buffer_atomic_add v12, v13, s[56:59], 0 offen sc1")
                A("s_mov_b64 exec, -1")
                A.label(l2)
            A("s_sub_u32 s44, s44, 1")
            A("s_cmp_lg_u32 s44, 0")
            A("s_cbranch_scc1 %s" % lab)
            def poll0():
                A("v_mov_b32 v3, 0")
                A("buffer_load_dword v4, v3, s[56:59], 0 offen sc1")
            def fetch(typ=typ):
                l1, l2, l3 = A.newlabel("pa"), A.newlabel("pb"), A.newlabel("pc")
                A("s_cmp_lg_u32 s28, 7")
                A("s_cbranch_scc1 %s" % l3)
                A.label(l1)
                A("v_readfirstlane_b32 s38, v4")
                A("s_cmp_ge_u32 s38, 256")
                A("s_cbranch_scc1 %s" % l2)
                A("buffer_load_dword v4, v3, s[56:59], 0 offen sc1")
                A("s_waitcnt vmcnt(0)")
                A("s_branch %s" % l1)
                A.label(l2)
                A("s_lshl_b32 s38, s29, 10")
                A("s_add_u32 s38, s38, %d" % (32768 if typ == "qkv" else 49152))
                A("s_add_u32 s41, s38, %d" % (8192 - 1024))
                A("s_mov_b32 m0, %d" % K1_SP)
                if typ == "qkv":
                    A("v_lshrrev_b32 v2, 4, v1")
                    A("v_and_b32 v7, 0xf0, v19")
                    A("v_lshl_add_u32 v2, v2, 12, v7")
                    A("s_lshl_b32 s39, s30, 8")
                    A("s_add_u32 s39, s39, %d" % (CSO - 2048))
                else:
                    A("v_mov_b32 v2, v19")
                    A("s_mul_i32 s39, s30, 896")
                    A("s_add_u32 s39, s39, %d" % (CSO - 2048 + 3072 * 4))
                A("s_add_u32 s40, s39, %d" % (32768 - 1024))
                A("buffer_load_dwordx4 v19, s[52:55], s38 offen sc1 lds")
                A("buffer_load_dwordx4 v19, s[52:55], s41 offen offset:1024 sc1 lds")
                A("buffer_load_dwordx4 v2, s[52:55], s39 offen offset:2048 sc1 lds")
                A("buffer_load_dwordx4 v2, s[52:55], s40 offen offset:3072 sc1 lds")
                if typ == "w1":
                    srd(A, 16, 26, 3584 * 2)
                    A("s_mov_b32 m0, %d" % (K1_SP + 4096))
                    A("s_mul_i32 s39, s30, 448")
                    A("buffer_load_dwordx4 v19, s[16:19], s39 offen lds")
                A.label(l3)
            def par_addr(typ=typ):
                A("v_lshlrev_b32 v7, 6, v1")
                A("s_lshl_b32 s38, s31, 12")
                srd(A, 16, 90, 3584 * 2048)
                A("buffer_load_dword v3, v7, s[16:19], s38 offen")
                srd(A, 16, 92, 1024 * 2048)
                A("buffer_load_dword v4, v7, s[16:19], s38 offen")
                A("s_lshl_b32 s38, s32, 7")
                A("s_sub_u32 s39, %d, s38" % (K1_SP + 7 * 128))
                A("s_add_u32 s38, s38, %d" % K1_SP)
                A("v_and_b32 v2, 15, v1")
                A("v_and_b32 v7, 48, v1")
                A("v_lshl_add_u32 v12, v2, 2, s38")
                A("v_lshl_add_u32 v13, v2, 2, s39")
                if typ == "qkv":
                    A("v_add_u32 v14, s38, v7")
                    A("v_add_u32 v15, s39, v7")
                    A("s_lshl_b32 s38, s33, 7")
                    A("s_add_u32 s38, s38, %d" % (K1_SP + 2048))
                    A("v_add_u32 v5, s38, v7")
                    A("v_lshl_add_u32 v6, v2, 2, s38")
                else:
                    A("s_lshl_b32 s38, s33, 9")
                    A("s_add_u32 s38, s38, %d" % (K1_SP + 2048))
                    A("v_add_u32 v5, s38, v7")
                    A("v_lshrrev_b32 v7, 1, v7")
                    A("s_lshl_b32 s38, s33, 8")
                    A("s_add_u32 s38, s38, %d" % (K1_SP + 4096))
                    A("v_add_u32 v14, s38, v7")
                    A("v_and_b32 v2, 16, v1")
                    A("v_lshrrev_b32 v7, 3, v1")
                    A("v_and_b32 v7, 4, v7")
                    A("v_add_u32 v2, v2, v7")
                    A("s_lshl_b32 s38, s33, 5")
                    A("s_add_u32 s38, s38, %d" % (K1_SP + 2048 + 384))
                    A("v_lshl_add_u32 v6, v2, 2, s38")
                    A("s_lshl_b32 s38, s33, 4")
                    A("s_add_u32 s38, s38, %d" % (K1_SP + 4096 + 192))
                    A("v_lshl_add_u32 v15, v2, 1, s38")
            pr = [["ds_read_b32 %s, %s offset:%d" % (v(EX + 2 * mb + h), v(12 + (mb >> 1)), (mb & 1) * 64 + h * 1024)] for mb in range(4) for h in range(2)]
            if typ == "qkv":
                C1 = CR + 18
                for h, c in enumerate((CR, C1)):
                    pr += [["ds_read_b128 %s, v5 offset:%d" % (v(c + 4 * t, 4), h * 1024 + (t >> 1) * 256 + (t & 1) * 64)] for t in range(4)]
                    pr += [["ds_read_b32 %s, v6 offset:%d" % (v(c + 16 + t), h * 1024 + 512 + t * 64)] for t in range(2)]
                pr += [["ds_read_b128 %s, %s offset:%d" % (v(EX + 8 + 8 * mb + 4 * h, 4), v(14 + (mb >> 1)), (mb & 1) * 64 + h * 1024)]
                       for mb in range(4) for h in range(2)]
            else:
                C1 = EX + 8
                for h, c in enumerate((CR, C1)):
                    pr += [["ds_read_b128 %s, %s offset:%d" % (v(c + 4 * t, 4), "v5" if t < 6 else "v6", h * 1024 + (t * 64 if t < 6 else 0))] for t in range(7)]
                pr += [["ds_read_b64 %s, %s offset:%d" % (v(CR + 28 + 2 * t, 2), "v14" if t < 6 else "v15", t * 32 if t < 6 else 0)] for t in range(7)]
            period(28, 2 * L, False, False, extra=poll0 if role else None)
            period(29, 0 if role else L, False, False, extra=fetch if role else None)
            period(30, 63 if role else 0, False, False, extra=par_addr)
            period(31, 2, False, False, rd=pr)
            if role == 0:
                A("s_branch L_k1_%s_epi" % typ)
        A.label("L_k1_%s_epi" % typ)
        st(A, "loop")
        A("s_waitcnt lgkmcnt(0)")
        for i in range(0, 18 if typ == "qkv" else 28, 2):
            A("v_pk_add_f32 %s, %s, %s" % (v(CR + i, 2), v(CR + i, 2), v(C1 + i, 2)))
        ND = 240 if typ == "qkv" else 208
        for mb in range(4):
            A("v_mov_b32 %s, %s" % (v(ND + 2 * mb), v(EX + 2 * mb + 1)))
            A("v_mov_b32 %s, %s" % (v(ND + 2 * mb + 1), v(EX + 2 * mb + 1)))
            A("v_mov_b32 %s, %s" % (v(EX + 2 * mb + 1), v(EX + 2 * mb)))
        if typ == "qkv":
            for i in range(4):
                A("v_mov_b32 %s, %s" % (v(ND + 8 + i), v(CR + 16 + i // 2)))
        srd(A, 12, 6, ACT_BYTES, WS_ACT)
        A("s_lshl_b32 s39, s29, 14")
        A("s_lshl_b32 s40, s32, 11")
        A("s_sub_u32 s41, %d, s40" % (7 * 2048))
        A("s_add_u32 s40, s40, s39")
        A("s_add_u32 s41, s41, s39")
        if typ == "qkv":
            T = 152
            def norm(mb, nb):
                c = g.accr(mb, nb)
                for i in (0, 2):
                    if nb < 4:
                        A("v_pk_mul_f32 %s, %s, %s" % (v(T + i, 2), v(CR + 4 * nb + i, 2), v(ND + 2 * mb, 2)))
                    else:
                        A("v_pk_mul_f32 %s, %s, %s" % (v(T + i, 2), v(EX + 12 + 8 * mb + i, 2), v(ND + 8 + 2 * (nb - 4), 2)))
                for i in (0, 2):
                    if nb < 4:
                        A("v_pk_fma_f32 %s, %s, %s, %s" % (v(c + i, 2), v(c + i, 2), v(EX + 2 * mb, 2), v(T + i, 2)))
                    else:
                        A("v_pk_fma_f32 %s, %s, %s, %s" % (v(c + i, 2), v(c + i, 2), v(EX + 8 + 8 * mb + i, 2), v(T + i, 2)))
            def pack(d, c0, c1):
                for h, c in enumerate((c0, c1)):
                    A("v_cvt_pk_bf16_f32 %s, %s, %s" % (v(d + 2 * h), v(c), v(c + 1)))
                    A("v_cvt_pk_bf16_f32 %s, %s, %s" % (v(d + 2 * h + 1), v(c + 2), v(c + 3)))
            srd(A, 16, 6, 8 * MB_, WS_KV)
            A("s_lshl_b32 s34, s29, 4")
            A("s_add_u32 s34, s34, s30")
            A("s_lshl_b32 s35, s34, 16")
            A("s_lshl_b32 s38, s33, 15")
            A("s_add_u32 s38, s38, s35")
            A("s_lshl_b32 s39, s32, 12")
            A("s_sub_u32 s43, %d, s39" % (7 * 4096))
            A("s_add_u32 s42, s38, s39")
            A("s_add_u32 s38, s38, s43")
            A("s_lshl_b32 s36, s33, 16")
            A("s_add_u32 s39, s39, s36")
            A("s_add_u32 s43, s43, s36")
            A("v_add_u32 v12, s43, v19")
            A("v_add_u32 v13, s39, v19")
            for grp in range(2):
                for k in range(4):
                    d = T + 4 + 4 * (grp * 4 + k)
                    if k < 2:
                        mb = 2 * grp + k
                        norm(mb, 2); norm(mb, 3)
                        pack(d, g.accr(mb, 2), g.accr(mb, 3))
                    else:
                        norm(2 * grp, 2 + k); norm(2 * grp + 1, 2 + k)
                        pack(d, g.accr(2 * grp, 2 + k), g.accr(2 * grp + 1, 2 + k))
                    A("buffer_store_dwordx4 %s, v19, s[16:19], %s offen offset:%d sc1" % (v(d, 4), "s38" if grp else "s42", k * 1024))
                    A("ds_write_b128 %s, %s offset:%d" % (v(12 + grp), v(d, 4), k * 1024))
            QR, OA, MA = 192, 208, 14
            for mb in range(4):
                norm(mb, 0); norm(mb, 1)
            for mb in range(4):
                pack(QR + 4 * mb, g.accr(mb, 0), g.accr(mb, 1))
            A("s_waitcnt lgkmcnt(0)")
            A("s_barrier")
            st(A, "epi")
            A("v_and_b32 v2, 15, v1")
            A("v_lshrrev_b32 v7, 4, v1")
            A("v_lshlrev_b32 v7, 2, v7")
            A("s_mov_b64 s[50:51], s[40:41]")
            for r in range(4):
                A("v_add_u32 v8, %d, v7" % r)
                A("v_cmp_lt_u32 %s, v2, v8" % s(36 + 2 * r, 2))
            A("s_mov_b64 s[44:45], -1")
            A("s_mov_b64 s[46:47], 0")
            A("v_mov_b32 v7, 0xff800000")
            for i in range(4):
                A("v_mov_b32 %s, 0x3f803f80" % v(188 + i))
                A("v_mov_b32 %s, v7" % v(MA + i))
            for i in range(48):
                A("v_mov_b32 %s, 0" % v(OA + i))
            A("s_mov_b32 s48, %s" % f32((32 ** -0.5) * math.log2(math.e)))
            A("s_mov_b32 s49, s48")
            A("s_add_u32 s20, s32, 1")
            A("s_sub_u32 s21, 8, s32")
            A("s_mov_b32 s22, 0")
            A("s_mov_b32 s31, 1")
            A("s_mov_b32 s68, 0")
            A("s_lshl_b32 s27, s29, 11")
            A("s_add_u32 s27, s27, %d" % (16384 + 64))
            A("s_lshl_b32 s23, s34, 7")
            A("s_add_u32 s23, s23, 16384")
            A("v_mov_b32 v18, 0")
            A("v_mov_b32 v20, 1")
            A("s_waitcnt vmcnt(0)")
            A("s_mov_b64 exec, 1")
            A("buffer_atomic_add v20, v18, s[52:55], s23 offen sc1")
            A("s_mov_b64 exec, -1")
            st(A, "at0")
            stubs = []
            A.label("L_k1_part")
            attn_body(A, "atB", QR + 8, OA + 24, MA + 2, 13, 21, stubs)
            A("s_cmp_lg_u32 s22, 0")
            A("s_cbranch_scc1 L_k1_g2pf")
            A("s_cmp_eq_u32 s29, 0")
            A("s_cbranch_scc1 L_k1_nofetch")
            st(A, "at1")
            A("s_sub_u32 s23, s23, 2048")
            A.label("L_k1_kvpoll")
            A("buffer_load_dword v20, v18, s[52:55], s23 offen sc1")
            A("s_waitcnt vmcnt(0)")
            A("v_readfirstlane_b32 s24, v20")
            A("s_cmp_lt_u32 s24, 8")
            A("s_cbranch_scc1 L_k1_kvpoll")
            st(A, "at2")
            A("s_lshl_b32 s24, s28, 13")
            A("s_add_u32 s25, s35, s24")
            A("s_sub_u32 s25, s25, 0x100000")
            A("s_lshl_b32 s26, s33, 15")
            A("s_add_u32 s24, s24, s26")
            for h in range(2):
                A("s_add_u32 m0, s24, %d" % (32768 + h * 4096))
                A("s_add_u32 s26, s25, %d" % (h * 4096))
                for i in range(4):
                    A("buffer_load_dwordx4 v19, s[16:19], s26 offen offset:%d sc1 lds" % (i * 1024))
            A.label("L_k1_nofetch")
            A("buffer_load_dword v22, v18, s[52:55], s27 offen sc1")
            attn_body(A, "atA", QR, OA, MA, 12, 20, stubs)
            A("s_cmp_lg_u32 s22, 0")
            A("s_cbranch_scc1 L_k1_atdone")
            A("s_cmp_eq_u32 s29, 0")
            A("s_cbranch_scc1 L_k1_atdone")
            st(A, "at3")
            A("s_mov_b32 s22, 1")
            for r in range(6):
                A("s_not_b64 %s, %s" % (s(36 + 2 * r, 2), s(36 + 2 * r, 2)))
            A("s_mov_b32 s24, s20")
            A("s_mov_b32 s20, s21")
            A("s_mov_b32 s21, s24")
            A("v_add_u32 v8, 32768, v12")
            A("v_add_u32 v12, 32768, v13")
            A("v_mov_b32 v13, v8")
            A("s_waitcnt vmcnt(0)")
            A("s_barrier")
            st(A, "at4")
            A("s_branch L_k1_part")
            A.label("L_k1_g2pf")
            A("s_cmp_lt_u32 s28, 4")
            A("s_cbranch_scc1 L_k1_nofetch")
            A("buffer_load_dword v22, v18, s[52:55], s27 offen sc1")
            g2_loader_setup(A)
            A("s_waitcnt vmcnt(0)")
            A("v_readfirstlane_b32 s24, v22")
            A("s_cmp_lt_u32 s24, 16")
            A("s_cbranch_scc1 L_k1_nofetch")
            A("s_mov_b32 s68, 1")
            for sl in range(2):
                g2_dma_w(A, sl)
                g2_dma_a(A, sl)
            A("s_branch L_k1_nofetch")
            for lab, tail, back in stubs:
                A.label(lab)
                for i in tail: A(i)
                A("s_branch %s" % back)
            A.label("L_k1_atdone")
            A("s_lshl_b32 s24, s30, 1")
            A("s_add_u32 s24, s24, s33")
            A("s_add_u32 s24, s24, 112")
            A("s_lshl_b32 s24, s24, 17")
            A("s_add_u32 s50, s50, s24")
            A("s_add_u32 s51, s51, s24")
            A("s_nop 4")
            for q in (2, 3, 0, 1):
                o = OA + 12 * q
                A("v_rcp_f32 v8, %s" % v(o + 8))
                A("s_nop 0")
                for i in range(8):
                    A("v_mul_f32 %s, %s, v8" % (v(o + i), v(o + i)))
                pack(28 + 4 * q, o, o + 4)
                A("buffer_store_dwordx4 %s, v19, s[12:15], %s offen offset:%d sc1" % (v(28 + 4 * q, 4), s(50 + (q >> 1)), (q & 1) * 1024))
            A("s_barrier")
            A("s_cmp_lt_u32 s28, 4")
            A("s_cbranch_scc1 L_g2_q0")
            A("s_cmp_eq_u32 s68, 0")
            A("s_cbranch_scc1 L_g2_q1")
            for sl in range(2, 4):
                g2_dma_w(A, sl)
                g2_dma_a(A, sl)
            A("s_waitcnt vmcnt(20)")
            A("s_branch L_g2_com")
            A.label("L_g2_q1")
            g2_loader_setup(A)
            for sl in range(G2R): g2_dma_w(A, sl)
            A("s_waitcnt vmcnt(20)")
            A("s_branch L_g2_com")
            A.label("L_g2_q0")
            A("s_waitcnt vmcnt(0)")
            A("s_branch L_g2_com")
        else:
            st(A, "epi")
            A("s_mov_b32 s31, 0")
            A("s_mov_b32 s68, 0")
            BR, T = EX + 8, FR0 + 44
            for t in range(7):
                b = CR + 28 + 2 * t
                A("v_lshlrev_b32 %s, 16, %s" % (v(BR + 4 * t), v(b)))
                A("v_and_b32 %s, 0xffff0000, %s" % (v(BR + 4 * t + 1), v(b)))
                A("v_lshlrev_b32 %s, 16, %s" % (v(BR + 4 * t + 2), v(b + 1)))
                A("v_and_b32 %s, 0xffff0000, %s" % (v(BR + 4 * t + 3), v(b + 1)))
            c0 = -2.0 * math.sqrt(2.0 / math.pi) * math.log2(math.e)
            for i in range(2):
                A("v_mov_b32 %s, %s" % (v(8 + i), f32(c0)))
                A("v_mov_b32 %s, %s" % (v(12 + i), f32(c0 * 0.044715)))
                A("v_mov_b32 %s, 1.0" % v(216 + i))
            A("s_mul_i32 s38, s30, 7")
            A("s_lshl_b32 s38, s38, 17")
            A("s_add_u32 s40, s40, s38")
            A("s_add_u32 s41, s41, s38")
            A("s_lshl_b32 s39, s33, 9")
            A("s_add_u32 s39, s39, 0x%x" % (3 << 17))
            A("s_add_u32 s42, s40, s39")
            A("s_add_u32 s43, s41, s39")
            A("s_lshl_b32 s39, s33, 19")
            A("s_add_u32 s40, s40, s39")
            A("s_add_u32 s41, s41, s39")
            A("v_and_b32 v10, 0xf0, v19")
            A("v_and_b32 v2, 16, v1")
            A("v_lshl_add_u32 v10, v2, 6, v10")
            A("v_and_b32 v2, 32, v1")
            A("v_lshl_add_u32 v10, v2, 3, v10")
            def act2(blks, d):
                P = [(g.accr(mb, nb) + i, T + 4 * h + i, mb, nb, i) for h, (mb, nb) in enumerate(blks) for i in (0, 2)]
                for c, t, mb, nb, i in P:
                    A("v_pk_fma_f32 %s, %s, %s, %s" % (v(t, 2), v(CR + 4 * nb + i, 2), v(ND + 2 * mb, 2), v(BR + 4 * nb + i, 2)))
                for c, t, mb, nb, i in P:
                    A("v_pk_fma_f32 %s, %s, %s, %s" % (v(c, 2), v(c, 2), v(EX + 2 * mb, 2), v(t, 2)))
                for c, t, mb, nb, i in P:
                    A("v_pk_mul_f32 %s, %s, %s" % (v(t, 2), v(c, 2), v(c, 2)))
                for c, t, mb, nb, i in P:
                    A("v_pk_fma_f32 %s, %s, v[12:13], v[8:9]" % (v(t, 2), v(t, 2)))
                for c, t, mb, nb, i in P:
                    A("v_pk_mul_f32 %s, %s, %s" % (v(t, 2), v(t, 2), v(c, 2)))
                for i in range(8): A("v_exp_f32 %s, %s" % (v(T + i), v(T + i)))
                for c, t, mb, nb, i in P:
                    A("v_pk_add_f32 %s, %s, v[216:217]" % (v(t, 2), v(t, 2)))
                for i in range(8): A("v_rcp_f32 %s, %s" % (v(T + i), v(T + i)))
                for c, t, mb, nb, i in P:
                    A("v_pk_mul_f32 %s, %s, %s" % (v(c, 2), v(c, 2), v(t, 2)))
                for k_, (c, t, mb, nb, i) in enumerate(P):
                    A("v_cvt_pk_bf16_f32 %s, %s, %s" % (v(d + k_), v(c), v(c + 1)))
            k = 0
            for pr in range(3):
                for mb in range(4):
                    d = T + 8 + 4 * (k % 6); k += 1
                    act2([(mb, 2 * pr), (mb, 2 * pr + 1)], d)
                    A("buffer_store_dwordx4 %s, v19, s[12:15], %s offen offset:%d sc1" % (v(d, 4), s(40 + (mb >> 1)), (mb & 1) * 1024))
                if pr < 2:
                    A("s_add_u32 s40, s40, 0x20000")
                    A("s_add_u32 s41, s41, 0x20000")
            for h in range(2):
                d = T + 8 + 4 * (k % 6); k += 1
                act2([(2 * h, 6), (2 * h + 1, 6)], d)
                A("s_nop 1")
                A("v_permlane16_swap_b32 %s, %s" % (v(d), v(d + 2)))
                A("v_permlane16_swap_b32 %s, %s" % (v(d + 1), v(d + 3)))
                A("buffer_store_dwordx4 %s, v10, s[12:15], %s offen sc1" % (v(d, 4), s(42 + h)))
            A("s_lshl_b32 s27, s29, 11")
            A("s_add_u32 s27, s27, %d" % (16384 + 64))
            A("s_lshr_b32 s26, s30, 2")
            A("s_lshl_b32 s26, s26, 7")
            A("s_add_u32 s26, s26, 256")
            A("v_mov_b32 v22, 0")
            A("s_cmp_lt_u32 s28, 4")
            A("s_cbranch_scc1 L_g2_p0")
            g2_loader_setup(A)
            for sl in range(G2R): g2_dma_w(A, sl)
            A("s_waitcnt vmcnt(16)")
            A("s_branch L_g2_p1")
            A.label("L_g2_p0")
            A("v_mov_b32 v23, 1")
            A("v_mul_lo_u32 v21, v1, s26")
            A("s_waitcnt vmcnt(0)")
            A.label("L_g2_p1")
            A("s_barrier")
            A("s_cmp_lg_u32 s28, 0")
            A("s_cbranch_scc1 L_g2_com")
            A("s_mov_b64 exec, 3")
            A("buffer_atomic_add v23, v21, s[52:55], s27 offen sc1")
            A("s_mov_b64 exec, -1")
    gen_g2f(A)
    A.label("L_k1_done")
    A("s_endpgm")
    kernel_desc(A, name, 256, 96)
    return "; @launch %sgrid=(256,1,1) block=(512,1,1) lds=163840" % (("kernel=%s " % name) if os.environ.get("LIST") else "")

def main2(out):
    A = Asm()
    A.raw('.amdgcn_target "amdgcn-amd-amdhsa--gfx950"')
    ls = [gen_k1(A)]
    hdr = "; generated by dev/kf.py\n" + "\n".join(ls) + "\n"
    open(out, "w").write(hdr + A.text())

if __name__ == "__main__":
    main2(sys.argv[1] if len(sys.argv) > 1 else "cdna_kernels/%s.s" % NAME)
```

```python
from gen import *

STL = os.environ.get("STL", "start,p0,loop,epi").split(",")
def st(A, name):
    if name in STL: stamp(A, STL.index(name))

SCHEDS = {
 "a": {"pre": "W0 A0_0 A0_1 W1", "post": "A1_0 A1_1 W2", -1: "W3", 0: "A2_0 A2_1 W4", 1: "W5 A3_0 S0 S1 S2 S3", 2: "W6 A3_1 S4 S5 S6 S7",
       3: "W7 A4_0", 4: "W8 A4_1", 5: "W9 A5_0", 6: "W10 A5_1", 7: "W11 A6_0"},
 "b": {"pre": "W0 A0_0 A0_1 W1", "post": "A1_0 A1_1 W2 S0 S1 S2 S3", -1: "W3 S4 S5 S6 S7", 0: "A2_0 A2_1 W4", 1: "W5 A3_0", 2: "W6 A3_1",
       3: "W7 A4_0", 4: "W8 A4_1", 5: "W9 A5_0", 6: "W10 A5_1", 7: "W11 A6_0"},
 "c": {"pre": "W0 A0_0 A0_1 W1", "pre2": "S0 S1 S2 S3 S4 S5 S6 S7", "post": "A1_0 A1_1 W2", -1: "W3", 0: "A2_0 A2_1 W4", 1: "W5 A3_0", 2: "W6 A3_1",
       3: "W7 A4_0", 4: "W8 A4_1", 5: "W9 A5_0", 6: "W10 A5_1", 7: "W11 A6_0"},
 "e": {"pre": "W0 A0_0 A0_1 W1", "post": "A1_0 A1_1 W2", -1: "W3", 0: "A2_0 A2_1 W4", 1: "W5 A3_0", 2: "W6 A3_1",
       3: "W7 A4_0 S0 S1 S2 S3", 4: "W8 A4_1 S4 S5 S6 S7", 5: "W9 A5_0", 6: "W10 A5_1", 7: "W11 A6_0"},
 "f": {"pre": "W0 A0_0 A0_1 W1 A1_0 A1_1 W2 W3 A2_0 A2_1", 0: "W4", 1: "W5 A3_0", 2: "W6 A3_1 S0 S1 S2 S3",
       3: "W7 A4_0 S4 S5 S6 S7", 4: "W8 A4_1", 5: "W9 A5_0", 6: "W10 A5_1", 7: "W11 A6_0"},
 "d": {"pre": "W0 A0_0 A0_1 W1", "post": "A1_0 A1_1 W2", -1: "W3", 0: "A2_0 A2_1 W4 S0 S1", 1: "W5 A3_0 S2 S3", 2: "W6 A3_1 S4 S5",
       3: "W7 A4_0 S6 S7", 4: "W8 A4_1", 5: "W9 A5_0", 6: "W10 A5_1", 7: "W11 A6_0"},
}
SCHED = SCHEDS[os.environ.get("SCHED", "a")]
WS_KV, WS_SYNC = 8 * MB_, 48 * MB_
WSO = int(os.environ.get("WSO", "0")) * MB_
WS_KV, WS_SYNC, WS_ACT, WS_PART, WS_FLAG = (x + WSO for x in (WS_KV, WS_SYNC, WS_ACT, WS_PART, WS_FLAG))
assert WS_SYNC + 131072 <= 256 * MB_
K1_WR, K1_WST, K1_SP = 98304, 14336, 155648

def reduce64(A, x, t, op="v_add_f32"):
    for r in (8, 4, 2, 1):
        A("s_nop 1")
        A("%s_dpp %s, %s, %s row_ror:%d row_mask:0xf bank_mask:0xf" % (op, v(x), v(x), v(x), r))
    xlane_sum(A, x, t, op=op, ror8=False)

def k1_stats(A, T):
    X, a_, b_, m_, q_ = T + 8, T + 24, T + 25, T + 26, T + 27
    for i in range(8):
        A("v_lshlrev_b32 %s, 16, %s" % (v(X + 2 * i), v(T + i)))
        A("v_and_b32 %s, 0xffff0000, %s" % (v(X + 2 * i + 1), v(T + i)))
    A("v_add_f32 %s, %s, %s" % (v(a_), v(X), v(X + 1)))
    A("v_add_f32 %s, %s, %s" % (v(b_), v(X + 2), v(X + 3)))
    for i in range(4, 16, 2):
        A("v_add_f32 %s, %s, %s" % (v(a_), v(a_), v(X + i)))
        A("v_add_f32 %s, %s, %s" % (v(b_), v(b_), v(X + i + 1)))
    A("v_add_f32 %s, %s, %s" % (v(a_), v(a_), v(b_)))
    reduce64(A, a_, b_)
    A("v_mul_f32 %s, %s, %s" % (v(m_), f32(1.0 / 1024), v(a_)))
    for i in range(16):
        A("v_sub_f32 %s, %s, %s" % (v(X + i), v(X + i), v(m_)))
    A("v_mul_f32 %s, %s, %s" % (v(a_), v(X), v(X)))
    A("v_mul_f32 %s, %s, %s" % (v(b_), v(X + 1), v(X + 1)))
    for i in range(2, 16, 2):
        A("v_fmac_f32 %s, %s, %s" % (v(a_), v(X + i), v(X + i)))
        A("v_fmac_f32 %s, %s, %s" % (v(b_), v(X + i + 1), v(X + i + 1)))
    A("v_add_f32 %s, %s, %s" % (v(a_), v(a_), v(b_)))
    reduce64(A, a_, b_)
    A("v_mul_f32 %s, %s, %s" % (v(q_), f32(1.0 / 1024), v(a_)))
    def std(dst, var):
        A("v_mov_b32 %s, %s" % (v(dst), v(var)))
        rnd_bf16(A, dst)
        A("v_add_f32 %s, %s, %s" % (v(dst), f32(1e-5), v(dst)))
        rnd_bf16(A, dst)
        A("v_sqrt_f32 %s, %s" % (v(dst), v(dst)))
        A("s_nop 0")
        rnd_bf16(A, dst)
    s1, mb_, s2, m2 = X, X + 1, X + 2, X + 3
    std(s1, q_)
    A("v_rcp_f32 %s, %s" % (v(T), v(s1)))
    A("v_mov_b32 %s, %s" % (v(mb_), v(m_)))
    rnd_bf16(A, mb_)
    A("v_mul_f32 %s, -%s, %s" % (v(T + 1), v(T), v(mb_)))
    A("v_sub_f32 %s, %s, %s" % (v(m2), v(m_), v(mb_)))
    A("v_mul_f32 %s, %s, %s" % (v(m2), v(m2), v(T)))
    rnd_bf16(A, m2)
    A("v_mul_f32 %s, %s, %s" % (v(q_), v(q_), v(T)))
    A("v_mul_f32 %s, %s, %s" % (v(q_), v(q_), v(T)))
    std(s2, q_)
    A("v_rcp_f32 %s, %s" % (v(s2), v(s2)))
    A("v_fma_f32 %s, %s, %s, %s" % (v(m2), v(m2), v(s1), v(mb_)))
    A("v_mul_f32 %s, %s, %s" % (v(T + 2), v(T), v(s2)))
    A("v_mul_f32 %s, -%s, %s" % (v(T + 3), v(T + 2), v(m2)))

def attn_body(A, tag, Qr, O, M, base, sN, stubs):
    S_, KF, VF, ONES, NINF = 28, 156, 172, 188, 7
    def Sr(j, qb, kb): return S_ + 16 * j + 8 * qb + 4 * kb
    def rd(F, j, off):
        for k in range(2):
            A("ds_read_b128 %s, %s offset:%d" % (v(F + 8 * (j & 1) + 4 * k, 4), v(base), j * 4096 + off + k * 1024))
    def mx(j, qb, kb):
        b, out = Sr(j, qb, kb), []
        if j == 0:
            for r in range(4):
                m = s(36 + 2 * r, 2) if qb == kb else ("s[44:45]" if kb else "s[46:47]")
                out.append("v_cndmask_b32 %s, %s, v7, %s" % (v(b + r), v(b + r), m))
        for i in (0, 2):
            src0 = v(M + qb) if (j == 0 and kb == 0 and i == 0) else v(8 + qb)
            out.append("v_max3_f32 %s, %s, %s, %s" % (v(8 + qb), src0, v(b + i), v(b + i + 1)))
        return out
    def pv(j):
        out = []
        for d in range(3):
            for qb in range(2):
                aop = v(VF + 8 * (j & 1) + 4 * d, 4) if d < 2 else v(ONES, 4)
                c = v(O + 12 * qb + 4 * d, 4)
                out.append("v_mfma_f32_16x16x32_bf16 %s, %s, %s, %s" % (c, aop, v(Sr(j, qb, 0), 4), c))
        return out
    l2, l3 = (A.newlabel(tag + x) for x in "bc")
    rd(KF, 0, 0)
    rd(VF, 0, 2048)
    for j in range(8):
        if j < 7:
            rd(KF, j + 1, 0)
            A("s_waitcnt lgkmcnt(%d)" % (4 if j == 0 else 2))
        else:
            A("s_waitcnt lgkmcnt(0)")
        for qb in range(2):
            for kb in range(2):
                A("v_mfma_f32_16x16x32_bf16 %s, %s, %s, 0" % (v(Sr(j, qb, kb), 4), v(KF + 8 * (j & 1) + 4 * kb, 4), v(Qr + 4 * qb, 4)))
                if j:
                    for i in mx(j - 1, qb, kb): A(i)
        tail = ["s_nop %d" % (5 if j else 7)] + [i for qb in range(2) for kb in range(2) for i in mx(j, qb, kb)]
        if j < 7:
            lab = A.newlabel(tag + "x")
            A("s_cmp_eq_u32 %s, %d" % (s(sN), j + 1))
            A("s_cbranch_scc1 %s" % lab)
            stubs.append((lab, tail, l2))
        else:
            for i in tail: A(i)
    A.label(l2)
    for sw in ("16", "32"):
        A("v_mov_b32 v10, v8")
        A("v_mov_b32 v11, v9")
        A("s_nop 0")
        A("v_permlane%s_swap_b32 v8, v10" % sw)
        A("v_permlane%s_swap_b32 v9, v11" % sw)
        A("v_max_f32 v8, v8, v10")
        A("v_max_f32 v9, v9, v11")
    for qb in range(2):
        A("v_sub_f32 %s, %s, %s" % (v(10 + qb), v(M + qb), v(8 + qb)))
        A("v_mul_f32 %s, s48, %s" % (v(10 + qb), v(10 + qb)))
        A("v_exp_f32 %s, %s" % (v(10 + qb), v(10 + qb)))
        A("v_mov_b32 %s, %s" % (v(M + qb), v(8 + qb)))
        A("v_mul_f32 %s, s48, %s" % (v(8 + qb), v(8 + qb)))
    for qb in range(2):
        for i in range(12):
            A("v_mul_f32 %s, %s, %s" % (v(O + 12 * qb + i), v(O + 12 * qb + i), v(10 + qb)))
    for j in range(8):
        fm = ["v_fma_f32 %s, %s, s48, -%s" % (v(Sr(j, 0, 0) + i), v(Sr(j, 0, 0) + i), v(8 + i // 8)) for i in range(16)]
        ex = ["v_exp_f32 %s, %s" % (v(Sr(j, 0, 0) + i), v(Sr(j, 0, 0) + i)) for i in range(16)]
        cv = ["v_cvt_pk_bf16_f32 %s, %s, %s" % (v(Sr(j, qb, 0) + i), v(Sr(j, qb, 0) + 2 * i), v(Sr(j, qb, 0) + 2 * i + 1)) for qb in range(2) for i in range(4)]
        mm = pv(j - 1) if j else []
        for i in range(4): A(fm[i])
        if j: A("s_waitcnt lgkmcnt(2)")
        for k in range(8):
            if mm and 1 <= k <= 6: A(mm[k - 1])
            A(ex[2 * k]); A(ex[2 * k + 1])
            if k + 2 < 8: A(fm[2 * k + 4]); A(fm[2 * k + 5])
            if k >= 1: A(cv[k - 1])
        A("s_nop 0")
        A(cv[7])
        tail = ["s_waitcnt lgkmcnt(0)", "s_nop 0"] + pv(j)
        if j < 7:
            lab = A.newlabel(tag + "y")
            A("s_cmp_eq_u32 %s, %d" % (s(sN), j + 1))
            A("s_cbranch_scc1 %s" % lab)
            stubs.append((lab, tail, l3))
            rd(VF, j + 1, 2048)
        else:
            for i in tail: A(i)
    A.label(l3)

G2R, G2ST = 4, 32768
PFD = int(os.environ.get("PFD", "0"))
SLP = int(os.environ.get("SLP", "8"))
G2_SP = int(os.environ.get("G2SP", "36"))
def g2_slot(sl): return (sl & 1) * 65536 + (sl >> 1) * G2ST
def g2_dma_w(A, slot):
    for ch in range(2):
        A("s_add_u32 m0, s35, %d" % (g2_slot(slot) + 16384 + ch * 1024))
        A("s_nop 0")
        for i in range(2):
            A("buffer_load_dwordx4 %s, s[8:11], s57 offen offset:%d lds" % (v(24 + ch + 2 * i), i * 2048))
    A("s_add_u32 s57, s57, 0x20000")
    A("s_cmp_eq_u32 s57, 0x%x" % (3584 * 2048))
    A("s_cselect_b32 s57, 0, s57")
def g2_dma_a(A, slot):
    A("s_add_u32 m0, s35, %d" % g2_slot(slot))
    A("s_nop 0")
    for i in range(4):
        A("buffer_load_dwordx4 v19, s[12:15], s56 offen offset:%d lds" % (i * 1024))
    A("s_add_u32 s56, s56, 0x40000")
    A("s_cmp_ge_u32 s56, s58")
    A("s_cselect_b32 s34, s58, 0")
    A("s_sub_u32 s56, s56, s34")
def g2_loader_setup(A):
    A("s_sub_u32 s35, s28, 4")
    A("s_lshr_b32 s56, s35, 1")
    A("s_lshl_b32 s56, s56, 17")
    A("s_lshl_b32 s34, s29, 14")
    A("s_add_u32 s56, s56, s34")
    A("s_and_b32 s34, s30, 4")
    A("s_lshl_b32 s34, s34, 11")
    A("s_add_u32 s56, s56, s34")
    A("s_and_b32 s34, s35, 1")
    A("s_lshl_b32 s34, s34, 12")
    A("s_add_u32 s56, s56, s34")
    A("v_lshrrev_b32 v25, 3, v1")
    A("v_lshlrev_b32 v25, 11, v25")
    A("v_bfe_u32 v21, v1, 4, 2")
    A("v_lshlrev_b32 v21, 1, v21")
    A("v_and_b32 v23, 7, v1")
    A("v_xor_b32 v21, v21, v23")
    A("v_lshl_add_u32 v25, v21, 4, v25")
    A("s_lshl_b32 s34, s35, 15")
    A("s_and_b32 s57, s30, 8")
    A("s_lshl_b32 s57, s57, 7")
    A("s_add_u32 s34, s34, s57")
    A("s_and_b32 s57, s30, 3")
    A("s_lshl_b32 s57, s57, 8")
    A("s_add_u32 s34, s34, s57")
    A("v_add_u32 v24, s34, v25")
    A("v_add_u32 v25, %d, v24" % 128)
    A("v_add_u32 v26, %d, v24" % (16384 - 2048))
    A("v_add_u32 v27, %d, v24" % (16384 + 128 - 2048))
    A("s_lshr_b32 s34, s30, 2")
    A("s_mul_i32 s34, s34, 14")
    A("s_mul_i32 s57, s31, %d" % G2_SP)
    A("s_add_u32 s57, s57, s34")
    A("s_cmp_ge_u32 s57, 56")
    A("s_cselect_b32 s34, 56, 0")
    A("s_sub_u32 s57, s57, s34")
    A("s_add_u32 s59, s56, 0x%x" % (112 * 131072))
    A("s_lshl_b32 s34, s57, 18")
    A("s_add_u32 s56, s56, s34")
    A("s_lshl_b32 s57, s57, 17")
    A("s_lshl_b32 s35, s35, 12")
    srd(A, 8, 90, 3584 * 2048)
    A("s_mov_b32 s58, 0x%x" % (112 * 131072))

def gen_g2f(A):
    R, KS, ST = G2R, 2, G2ST
    SP, SQ = G2_SP, 72 - G2_SP
    assert SP % 4 == 0 and SP <= 48
    NS = len(STL) + 2
    A.label("L_g2_com")
    st(A, "k1e")
    A("v_mov_b32 v21, 0")
    A("s_cmp_eq_u32 s31, 0")
    A("s_cselect_b32 s44, %d, %d" % (SP // R - 1, SQ // R - 1))
    A("s_cmp_ge_u32 s28, 4")
    A("s_cbranch_scc1 L_g2_loader")
    A("s_add_u32 s23, s27, 128")
    A("s_load_dwordx2 s[4:5], s[0:1], 0")
    A("s_load_dwordx4 s[24:27], s[0:1], 56")
    A("s_lshr_b32 s34, s30, 2")
    A("s_mul_i32 s34, s34, 14")
    A("s_mul_i32 s36, s31, %d" % SP)
    A("s_add_u32 s36, s36, s34")
    A("s_add_u32 s36, s36, 4")
    A("s_cmp_ge_u32 s36, 56")
    A("s_cselect_b32 s34, 56, 0")
    A("s_sub_u32 s36, s36, s34")
    A("s_lshl_b32 s36, s36, 17")
    srd(A, 12, 90, 3584 * 2048)
    A("s_lshl_b32 s29, s29, 1")
    A("s_bfe_u32 s34, s30, 0x10002")
    A("s_add_u32 s29, s29, s34")
    A("s_lshr_b32 s34, s30, 3")
    A("s_lshl_b32 s34, s34, 2")
    A("s_and_b32 s30, s30, 3")
    A("s_add_u32 s30, s30, s34")
    A("v_mov_b32 v3, v19")
    A("v_mov_b32 v18, 0")
    A("v_lshrrev_b32 v20, 2, v1")
    A("v_lshlrev_b32 v20, 11, v20")
    A("v_and_b32 v7, 3, v1")
    A("v_lshl_add_u32 v20, v7, 6, v20")
    A("s_lshl_b32 s34, s28, 15")
    A("s_lshl_b32 s37, s30, 8")
    A("s_add_u32 s34, s34, s37")
    A("v_add_u32 v20, s34, v20")
    touch = ["buffer_load_dword v18, v20, s[12:15], s36 offen", "s_add_u32 s36, s36, 0x20000",
             "s_cmp_eq_u32 s36, 0x%x" % (3584 * 2048), "s_cselect_b32 s36, 0, s36"] if PFD else []
    for i in range(PFD - 4):
        for t in touch: A(t)
    assert PFD == 0 or (PFD % 4 == 0 and PFD < 56 - SP)
    A("s_cmp_eq_u32 s31, 0")
    A("s_cselect_b32 s37, -1, %d" % (3 + PFD // 4))
    A("s_and_b32 s32, s28, 1")
    A("s_lshr_b32 s33, s28, 1")
    A("s_lshl_b32 s34, s32, 12")
    A("v_add_u32 v8, s34, v3")
    A("v_add_u32 v9, 0x10000, v8")
    A("v_lshrrev_b32 v6, 5, v1")
    A("v_lshlrev_b32 v6, 11, v6")
    A("v_bfe_u32 v7, v1, 2, 3")
    A("v_lshl_add_u32 v6, v7, 7, v6")
    A("v_bfe_u32 v7, v1, 3, 2")
    A("v_lshl_add_u32 v6, v7, 5, v6")
    A("v_and_b32 v7, 3, v1")
    A("v_lshl_add_u32 v6, v7, 3, v6")
    A("s_lshl_b32 s34, s33, 10")
    A("s_add_u32 s34, s34, 16384")
    A("v_add_u32 v10, s34, v6")
    for t in range(1, 4):
        A("v_xor_b32 %s, %d, v10" % (v(10 + t), 32 * t))
    for t in range(4):
        A("v_add_u32 %s, 0x10000, %s" % (v(14 + t), v(10 + t)))
    ACC, FR0, PT = 24, 88, 152
    A("v_and_b32 v19, 15, v1")
    A("v_lshlrev_b32 v19, 11, v19")
    A("v_lshrrev_b32 v7, 4, v1")
    A("v_lshlrev_b32 v7, 3, v7")
    A("s_lshl_b32 s38, s30, 8")
    A("s_lshl_b32 s39, s33, 7")
    A("s_add_u32 s38, s38, s39")
    A("s_lshl_b32 s39, s29, 18")
    A("s_lshl_b32 s47, s32, 17")
    A("s_add_u32 s39, s39, s47")
    A("s_add_u32 s39, s39, s38")
    A("s_lshl_b32 s48, s29, 3")
    A("s_add_u32 s48, s48, s30")
    A("s_lshl_b32 s48, s48, 2")
    A("s_add_u32 s48, s48, s28")
    A("s_lshl_b32 s49, s48, 5")
    A("s_add_u32 s49, s49, 0x%x" % (WS_FLAG - WS_PART))
    A("s_lshl_b32 s48, s48, 14")
    srd(A, 8, 6, WS_FLAG - WS_PART + 16384, WS_PART)
    def read_fn(slot, u, st_):
        hi, base = slot & 1, (slot >> 1) * ST
        xs = [["ds_read_b128 %s, %s offset:%d" % (v(g.xf(st_, mb), 4), v(8 + hi), base + u * 8192 + mb * 1024)] for mb in range(4)]
        ws = []
        for t in range(4):
            for j in range(2):
                ws.append(["ds_read_b64_tr_b16 %s, %s offset:%d" % (v(g.wf(st_, t) + 2 * j, 2), v(10 + 4 * hi + t), base + u * 8192 + j * 4096)])
        return xs[:1] + ws + xs[1:]
    g = Gemm(A, "g2", 4, 4, KS, R, 3 * R, ACC, FR0, read_fn, lambda sl: [touch], 0, cnt=44, rd_last=11)
    for i in range(64):
        A("v_mov_b32 %s, 0" % v(ACC + i))
    A("v_lshrrev_b32 v23, 4, v1")
    A("v_and_b32 v6, 1, v23")
    A("v_lshlrev_b32 v6, 5, v6")
    A("v_lshrrev_b32 v23, 1, v23")
    A("v_lshl_add_u32 v6, v23, 4, v6")
    A("v_add_u32 v6, v6, v19")
    A("s_cmp_lg_u32 s31, 0")
    A("s_cbranch_scc1 L_g2_zero")
    A("s_waitcnt lgkmcnt(0)")
    srd(A, 16, 4, 4 * MB_)
    srd(A, 40, 24, 2048)
    for t in range(4):
        A("buffer_load_dwordx2 %s, v7, s[40:43], s38 offen offset:%d" % (v(PT + 32 + 2 * t, 2), t * 32))
    for mb in range(4):
        A("s_add_u32 s47, s39, %d" % (mb * 32768))
        for h in range(2):
            A("buffer_load_dwordx4 %s, v6, s[16:19], s47 offen offset:%d" % (v(PT + 8 * mb + 4 * h, 4), h * 64))
    A("s_waitcnt vmcnt(0)")
    for t in range(4):
        b, bb = PT + 32 + 2 * t, PT + 40 + 4 * t
        A("v_lshlrev_b32 %s, 16, %s" % (v(bb), v(b)))
        A("v_and_b32 %s, 0xffff0000, %s" % (v(bb + 1), v(b)))
        A("v_lshlrev_b32 %s, 16, %s" % (v(bb + 2), v(b + 1)))
        A("v_and_b32 %s, 0xffff0000, %s" % (v(bb + 3), v(b + 1)))
    for d in range(PT, PT + 32, 4):
        A("v_permlane16_swap_b32 %s, %s" % (v(d), v(d + 2)))
        A("v_permlane16_swap_b32 %s, %s" % (v(d + 1), v(d + 3)))
    for mb in range(4):
        for t in range(4):
            c, x, bb = g.accr(mb, t), PT + 8 * mb + 2 * t, PT + 40 + 4 * t
            A("v_lshlrev_b32 %s, 16, %s" % (v(c), v(x)))
            A("v_and_b32 %s, 0xffff0000, %s" % (v(c + 1), v(x)))
            A("v_lshlrev_b32 %s, 16, %s" % (v(c + 2), v(x + 1)))
            A("v_and_b32 %s, 0xffff0000, %s" % (v(c + 3), v(x + 1)))
            for i in range(0, 4, 2):
                A("v_pk_add_f32 %s, %s, %s" % (v(c + i, 2), v(c + i, 2), v(bb + i, 2)))
    A.label("L_g2_zero")
    g.period(-1, R - 1, True, False, None, first=True)
    st(A, "g0")
    A("s_lshl_b32 s50, s28, 1")
    A("s_add_u32 s50, s50, s31")
    A("s_cmp_lg_u32 s50, 1")
    A("s_cbranch_scc1 L_g2_loop")
    A("v_mov_b32 v22, 1")
    A("s_mov_b64 exec, 1")
    A("buffer_atomic_add v22, v21, s[52:55], s23 offen sc1")
    A("s_mov_b64 exec, -1")
    A.label("L_g2_loop")
    for p in range(R):
        g.period(p, p, True, True, None)
    A("s_sub_u32 s44, s44, 1")
    if PFD:
        A("s_cmp_eq_u32 s44, s37")
        A("s_cselect_b32 s12, s92, s12")
        A("s_cselect_b32 s13, s93, s13")
        A("s_cselect_b32 s14, 0x200000, s14")
        A("s_cselect_b32 s36, 0, s36")
    A("s_waitcnt vmcnt(0)")
    A("v_readfirstlane_b32 s50, v18")
    A("buffer_load_dword v18, v21, s[8:11], s49 offen sc1")
    A("s_cmp_lg_u32 s44, 0")
    A("s_cbranch_scc1 L_g2_loop")
    A("s_cmp_lg_u32 s31, 0")
    A("s_cbranch_scc1 L_g2_poll")
    A("s_mov_b32 s50, 1")
    A("s_branch L_g2_np0")
    def fetch():
        for q in range(4):
            A("s_add_u32 s47, s48, %d" % (q * 4096))
            for i in range(4):
                A("buffer_load_dwordx4 %s, v3, s[8:11], s47 offen offset:%d sc1" % (v(PT + 16 * q + 4 * i, 4), i * 1024))
    A.label("L_g2_poll")
    st(A, "gp0")
    A("s_cmp_eq_u32 s50, 0")
    A("s_cbranch_scc1 L_g2_np0")
    fetch()
    A.label("L_g2_np0")
    for p in range(2):
        g.period(p, p, True, False, None)
    A("s_cmp_lg_u32 s50, 0")
    A("s_cbranch_scc1 L_g2_np1")
    A("s_waitcnt vmcnt(0)")
    A("v_readfirstlane_b32 s50, v18")
    A("s_cmp_eq_u32 s50, 0")
    A("s_cbranch_scc1 L_g2_np1")
    fetch()
    A.label("L_g2_np1")
    g.period(2, 2, True, False, None)
    A("s_waitcnt lgkmcnt(0)")
    g.period(R - 1, R - 1, False, False, None, barrier=False)
    A("s_cmp_lg_u32 s50, 0")
    A("s_cbranch_scc1 L_g2_np2")
    A.label("L_g2_poll1")
    A("buffer_load_dword v18, v21, s[8:11], s49 offen sc1")
    A("s_waitcnt vmcnt(0)")
    A("v_readfirstlane_b32 s50, v18")
    A("s_cmp_lg_u32 s50, 0")
    A("s_cbranch_scc1 L_g2_poll2")
    A("s_sleep 2")
    A("s_branch L_g2_poll1")
    A.label("L_g2_poll2")
    fetch()
    A.label("L_g2_np2")
    st(A, "g1")
    A("s_nop 7")
    A("s_cmp_lg_u32 s31, 0")
    A("s_cbranch_scc1 L_g2_fin")
    for mb in range(4):
        A("s_add_u32 s47, s48, %d" % (mb * 4096))
        for i in range(4):
            A("buffer_store_dwordx4 %s, v3, s[8:11], s47 offen offset:%d sc1" % (v(ACC + 16 * mb + 4 * i, 4), i * 1024))
    A("v_mov_b32 v22, 1")
    A("s_waitcnt vmcnt(0)")
    A("s_mov_b64 exec, 1")
    A("buffer_store_dword v22, v21, s[8:11], s49 offen sc1")
    A("s_mov_b64 exec, -1")
    stamp_out(A, 0, NS, 6, "s28")
    A("s_endpgm")
    A.label("L_g2_fin")
    srd(A, 16, 26, 4 * MB_)
    for mb in range(4):
        A("s_waitcnt vmcnt(%d)" % (12 - 4 * mb + 2 * mb))
        for i in range(0, 16, 2):
            A("v_pk_add_f32 %s, %s, %s" % (v(ACC + 16 * mb + i, 2), v(ACC + 16 * mb + i, 2), v(PT + 16 * mb + i, 2)))
        A("s_add_u32 s47, s39, %d" % (mb * 32768))
        for h in range(2):
            d = FR0 + 8 * mb + 4 * h
            for t in range(2):
                c = g.accr(mb, 2 * h + t)
                A("v_cvt_pk_bf16_f32 %s, %s, %s" % (v(d + 2 * t), v(c), v(c + 1)))
                A("v_cvt_pk_bf16_f32 %s, %s, %s" % (v(d + 2 * t + 1), v(c + 2), v(c + 3)))
            A("s_nop 1")
            A("v_permlane16_swap_b32 %s, %s" % (v(d), v(d + 2)))
            A("v_permlane16_swap_b32 %s, %s" % (v(d + 1), v(d + 3)))
            A("buffer_store_dwordx4 %s, v6, s[16:19], s47 offen offset:%d%s" % (v(d, 4), h * 64, OUTSC))
    stamp_out(A, 0, NS, 6, "s28")
    A("s_endpgm")
    A.label("L_g2_loader")
    A("s_setprio 3")
    A("s_add_u32 s38, s27, s26")
    A("s_add_u32 s39, s27, 128")
    A("s_cmp_eq_u32 s31, 0")
    A("s_cselect_b32 s38, s38, s27")
    A("s_cselect_b32 s39, s27, s39")
    A("s_cselect_b32 s41, 4, 16")
    A("s_cselect_b32 s46, 10, %d" % (52 - SP))
    A("s_cmp_eq_u32 s68, 0")
    A("s_cbranch_scc1 L_g2_hchk")
    st(A, "g0")
    A("v_mov_b32 v22, 0")
    A("s_waitcnt vmcnt(16)")
    A("s_barrier")
    A("s_branch L_g2_lloop")
    A.label("L_g2_hpoll")
    A("s_sleep %d" % SLP)
    A("buffer_load_dword v22, v21, s[52:55], s38 offen sc1")
    A("s_waitcnt vmcnt(0)")
    A.label("L_g2_hchk")
    A("v_readfirstlane_b32 s40, v22")
    A("s_cmp_lt_u32 s40, s41")
    A("s_cbranch_scc1 L_g2_hpoll")
    st(A, "g0")
    A("v_mov_b32 v22, 0")
    for sl in range(R):
        g2_dma_a(A, sl)
    A("s_waitcnt vmcnt(12)")
    A("s_barrier")
    outl = []
    def dma(slot):
        g2_dma_w(A, slot)
        g2_dma_a(A, slot)
        l1, l2, l3, l4 = (A.newlabel("g2o") for _ in range(4))
        A("s_sub_u32 s46, s46, 1")
        A("s_and_b32 s34, s46, 0xfffffffb")
        A("s_cbranch_scc0 %s" % l1)
        A.label(l2)
        outl.append((l1, l2, l3, l4))
    for p in range(R):
        A("s_waitcnt vmcnt(%d)" % (8, 12, 16, 16)[p])
        A("s_barrier")
        dma(p)
    A("s_sub_u32 s44, s44, 1")
    A.label("L_g2_lloop")
    for p in range(R):
        A("s_waitcnt vmcnt(%d)" % (8 * (R - 2)))
        A("s_barrier")
        dma(p)
    A("s_sub_u32 s44, s44, 1")
    A("s_cmp_lg_u32 s44, 0")
    A("s_cbranch_scc1 L_g2_lloop")
    for p in range(R - 1):
        A("s_waitcnt vmcnt(%d)" % (8 * (R - 2 - p)))
        A("s_barrier")
    for nm in ("g1",): st(A, nm)
    stamp_out(A, 0, NS, 6, "s28")
    A("s_endpgm")
    for l1, l2, l3, l4 in outl:
        A.label(l1)
        A("s_cmp_eq_u32 s46, 0")
        A("s_cbranch_scc1 %s" % l3)
        A("buffer_load_dword v22, v21, s[52:55], s39 offen sc1")
        A("s_branch %s" % l2)
        A.label(l4)
        A("s_sleep %d" % SLP)
        A("buffer_load_dword v22, v21, s[52:55], s39 offen sc1")
        A("s_waitcnt vmcnt(0)")
        A.label(l3)
        A("v_readfirstlane_b32 s40, v22")
        A("s_cmp_lt_u32 s40, 16")
        A("s_cbranch_scc1 %s" % l4)
        st(A, "gp0")
        A("s_cmp_eq_u32 s31, 0")
        A("s_cbranch_scc1 %s" % l2)
        srd(A, 8, 92, 1024 * 2048)
        A("s_mov_b32 s57, 0")
        A("s_mov_b32 s56, s59")
        A("s_mov_b32 s58, -1")
        A("s_branch %s" % l2)

TOUCH = os.environ.get("TOUCH", "late")
def w2touch(A, d):
    A("v_lshlrev_b32 v7, 6, v1")
    A("s_lshl_b32 s38, s31, 12")
    srd(A, 16, 90, 3584 * 2048)
    A("buffer_load_dword %s, v7, s[16:19], s38 offen" % v(d))
    srd(A, 16, 92, 1024 * 2048)
    A("buffer_load_dword %s, v7, s[16:19], s38 offen" % v(d + 1))

def gen_k1(A):
    name = NAME + "_kernel"
    kernel_begin(A, name)
    A("s_cmp_ge_u32 s2, 256")
    A("s_cbranch_scc1 L_k1_done")
    st(A, "start")
    A("s_load_dwordx4 s[20:23], s[0:1], 0")
    A("s_load_dwordx4 s[24:27], s[0:1], 32")
    A("s_load_dwordx4 s[4:7], s[0:1], 72")
    A("s_load_dwordx2 s[90:91], s[0:1], 48")
    A("s_load_dwordx2 s[92:93], s[0:1], 16")
    A("v_and_b32 v1, 63, v0")
    A("v_lshrrev_b32 v2, 6, v0")
    A("v_lshlrev_b32 v19, 4, v1")
    A("v_readfirstlane_b32 s28, v2")
    A("s_and_b32 s29, s2, 1")
    A("s_lshl_b32 s29, s29, 2")
    A("s_bfe_u32 s30, s2, 0x20003")
    A("s_add_u32 s29, s29, s30")
    A("s_bfe_u32 s30, s2, 0x20001")
    A("s_lshl_b32 s30, s30, 2")
    A("s_lshr_b32 s31, s2, 6")
    A("s_add_u32 s30, s30, s31")
    A("s_and_b32 s32, s28, 3")
    A("s_lshr_b32 s33, s28, 2")
    if "nomir" not in OPT:
        A("s_mul_i32 s34, s33, 7")
        A("s_xor_b32 s32, s32, s34")
    A("s_lshl_b32 s31, s2, 3")
    A("s_add_u32 s31, s31, s28")
    A("s_lshl_b32 s34, s31, 11")
    A("s_waitcnt lgkmcnt(0)")
    st(A, "karg")
    srd(A, 8, 20, 4 * MB_)
    TS = 160
    A("buffer_load_dwordx4 %s, v19, s[8:11], s34 offen" % v(TS, 4))
    A("buffer_load_dwordx4 %s, v19, s[8:11], s34 offen offset:1024" % v(TS + 4, 4))
    A("v_lshrrev_b32 v3, 3, v1")
    A("v_lshlrev_b32 v3, 11, v3")
    A("v_and_b32 v7, 7, v1")
    A("v_lshrrev_b32 v2, 4, v1")
    A("v_xor_b32 v7, v7, v2")
    A("v_lshl_add_u32 v3, v7, 4, v3")
    A("v_xor_b32 v4, 64, v3")
    A("v_add_u32 v4, %d, v4" % (8 * 2048 - 1024))
    A("s_lshl_b32 s36, s29, 19")
    A("s_lshl_b32 s34, s28, 16")
    A("s_add_u32 s36, s36, s34")
    A("s_lshl_b32 s46, s28, 12")
    A("s_mov_b32 s37, 0")
    A("s_lshl_b32 s35, s28, 11")
    A("s_add_u32 s35, s35, %d" % K1_WR)
    w_chunk(A, 5, 1, 7)
    A("v_lshrrev_b32 v6, 4, v1")
    A("v_lshlrev_b32 v6, 3, v6")
    A("v_bfe_u32 v7, v1, 2, 2")
    A("v_add_u32 v6, v6, v7")
    A("s_bitcmp1_b32 s2, 5")
    A("s_cbranch_scc1 L_k1_w1")
    ACC = 20
    CSO = 65536
    for typ in ("qkv", "w1"):
        NB = 6 if typ == "qkv" else 7
        FR0 = ACC + 16 * NB
        EX = FR0 + 8 * (4 + NB)
        rowb = 6144 if typ == "qkv" else 7168
        SL, SD, CR = 224, 220, FR0
        if typ == "w1":
            A.label("L_k1_w1")
        if typ == "qkv":
            srd(A, 12, 22, 1024 * 6144)
            A("s_cmp_ge_u32 s28, 3")
            A("s_cselect_b32 s38, 1, 0")
            A("s_mul_i32 s39, s38, 3")
            A("s_sub_u32 s39, s28, s39")
            A("s_lshl_b32 s39, s39, 11")
            A("s_lshl_b32 s40, s30, 1")
            A("s_add_u32 s40, s40, s38")
            A("s_lshl_b32 s40, s40, 6")
            A("s_add_u32 s39, s39, s40")
        else:
            srd(A, 12, 24, 1024 * 7168)
            A("s_mul_i32 s39, s30, 448")
            A("s_lshl_b32 s40, s28, 6")
            A("s_add_u32 s39, s39, s40")
        A("s_movk_i32 s40, %d" % rowb)
        A("v_mul_lo_u32 v6, v6, s40")
        A("v_add3_u32 v5, v5, v6, s39")
        A("v_add_u32 v6, %d, v5" % (4 * rowb - 1024))
        A("s_movk_i32 s40, 7168")
        A("s_movk_i32 s49, 0x3f80")
        g = Gemm(A, "k1", 4, NB, 1, 4, 32, ACC, FR0, None, None, 0, swap_fn=(lambda nb: nb >= 4) if typ == "qkv" else None)
        def reads(stage_par, wslot, st, NB=NB, g=g):
            xs = [["ds_read_b128 %s, %s offset:%d" % (v(g.xf(st, mb), 4), v(8 + 2 * (mb >> 1) + stage_par), (mb & 1) * 2048)] for mb in range(4)]
            ws = []
            for t in range(NB):
                b, off = (16 + (t & 1), (t >> 1) * 2048) if t < 6 else (0, 0)
                for j in range(2):
                    ws.append(["ds_read_b64_tr_b16 %s, %s offset:%d" % (v(g.wf(st, t) + 2 * j, 2), v(b), wslot * K1_WST + off + j * 1024)])
            return xs[:1] + ws + xs[1:]
        for role in (0, 1):
            ops = []
            def a_half(h, tag):
                ops.extend([tag, tag])
                if h == 0:
                    return [["s_mov_b32 m0, s46", "s_nop 0", "buffer_load_dwordx4 v3, s[8:11], s36 offen lds"],
                            ["buffer_load_dwordx4 v4, s[8:11], s36 offen offset:1024 lds", "s_add_u32 s34, s36, 32768"]]
                return [["s_add_u32 m0, s46, 2048", "s_add_u32 s36, s36, 128", "buffer_load_dwordx4 v3, s[8:11], s34 offen lds"],
                        ["buffer_load_dwordx4 v4, s[8:11], s34 offen offset:1024 lds", "s_add_u32 s46, s46, 32768",
                         "s_cmp_ge_u32 s46, 98304", "s_cselect_b32 s38, 98304, 0", "s_sub_u32 s46, s46, s38"]]
            def w_st(slot, tag, role=role, rowb=rowb):
                if role: return []
                ops.extend([tag, tag])
                return [["s_add_u32 m0, s35, %d" % (slot * K1_WST), "s_nop 0", "buffer_load_dwordx4 v5, s[12:15], s37 offen lds"],
                        ["buffer_load_dwordx4 v6, s[12:15], s37 offen offset:1024 lds", "s_add_u32 s37, s37, %d" % (32 * rowb)]]
            def emit(fs):
                for f in fs:
                    for i in f: A(i)
            def younger(tags):
                last = max([i for i, t in enumerate(ops) if t in tags] + [-1])
                return len(ops) - 1 - last
            if role == 0:
                A("s_cmp_ge_u32 s28, %d" % NB)
                A("s_cbranch_scc1 L_k1_%s_role1" % typ)
            else:
                A.label("L_k1_%s_role1" % typ)
            ops.extend(["row", "row"])
            def item(t):
                if t[0] == "W": return w_st(int(t[1:]) & 3, t)
                if t[0] == "A": return a_half(int(t[-1]), t[:-2])
                i = int(t[1:])
                ops.append("pf")
                return [["buffer_load_dwordx4 %s, v18, s[16:19], s41 offen" % v(SL + 4 * i, 4), "s_add_u32 s41, s41, s42"]]
            def items(key):
                return [f for t in SCHED.get(key, "").split() for f in item(t)]
            emit(items("pre"))
            A("s_cmp_lt_u32 s2, 96")
            A("s_cselect_b32 s16, s22, s24")
            A("s_cselect_b32 s17, s23, s25")
            A("s_cselect_b32 s38, 6144, s40")
            A("s_cselect_b32 s39, 0, 96")
            A("s_lshl_b32 s18, s38, 10")
            A("s_cmp_ge_u32 s2, 208")
            A("s_cselect_b32 s18, 0, s18")
            A("s_mov_b32 s19, 0x00020000")
            A("s_sub_u32 s39, s2, s39")
            A("s_and_b32 s41, s39, 1")
            A("s_lshl_b32 s41, s41, 3")
            A("s_add_u32 s41, s41, s28")
            A("s_lshl_b32 s41, s41, 6")
            A("s_mul_i32 s41, s41, s38")
            A("s_lshr_b32 s39, s39, 1")
            A("s_lshl_b32 s39, s39, 7")
            A("s_add_u32 s41, s41, s39")
            A("v_lshrrev_b32 v18, 3, v1")
            A("v_mul_lo_u32 v18, v18, s38")
            A("v_and_b32 v2, 7, v1")
            A("v_lshl_add_u32 v18, v2, 4, v18")
            A("s_lshl_b32 s42, s38, 3")
            emit(items("pre2"))
            A("v_and_b32 v2, 15, v1")
            A("v_and_b32 v7, 1, v1")
            A("v_lshlrev_b32 v7, 4, v7")
            A("v_lshlrev_b32 v7, v7, s49")
            A("v_lshrrev_b32 v2, 1, v2")
            for i in range(4):
                A("v_cmp_eq_u32 vcc, %d, v2" % i)
                A("s_nop 1")
                A("v_cndmask_b32 %s, 0, v7, vcc" % v(12 + i))
            A("v_and_b32 v2, 15, v1")
            A("v_lshlrev_b32 v8, 7, v2")
            A("v_lshrrev_b32 v2, 1, v2")
            A("v_lshrrev_b32 v7, 4, v1")
            A("v_xor_b32 v2, v2, v7")
            A("v_lshl_add_u32 v2, v2, 4, v8")
            A("s_lshl_b32 s38, s32, 12")
            A("s_sub_u32 s39, %d, s38" % (7 * 4096))
            A("v_add_u32 v8, s38, v2")
            A("v_add_u32 v10, s39, v2")
            A("v_xor_b32 v9, 64, v8")
            A("v_xor_b32 v11, 64, v10")
            tr_base(A, 0, 1, 7)
            A("s_mul_i32 s40, s33, %d" % ((3 if typ == "qkv" else 4) * 2048))
            A("s_add_u32 s40, s40, %d" % K1_WR)
            A("v_add_u32 v16, s40, v0")
            A("v_xor_b32 v17, 32, v16")
            if typ == "w1":
                A("v_and_b32 v0, 0xffffffe7, v0")
                A("v_and_b32 v7, 1, v1")
                A("v_lshlrev_b32 v7, 5, v7")
                A("v_xor_b32 v0, v0, v7")
                A("v_and_b32 v7, 2, v1")
                A("v_lshl_add_u32 v0, v7, 2, v0")
                A("s_lshl_b32 s40, s33, 4")
                A("s_add_u32 s40, s40, %d" % (K1_WR + 3 * 2048))
                A("v_add_u32 v0, s40, v0")
            for i in range(4):
                A("v_mov_b32 %s, 0" % v(20 + i))
            A("s_mov_b32 s47, 0")
            A("s_mov_b32 s50, 32768")
            A("s_mov_b32 s51, 32768")
            srd(A, 52, 6, 131072, WS_SYNC)
            srd(A, 56, 4, 256)
            st(A, "issued")
            A("s_waitcnt vmcnt(%d)" % younger(["row"]))
            st(A, "row")
            k1_stats(A, TS)
            st(A, "stats")
            for i in range(1, 4):
                A("v_cmp_eq_u32 vcc, %d, v1" % i)
                A("s_nop 1")
                A("v_cndmask_b32 %s, %s, %s, vcc" % (v(TS), v(TS), v(TS + i)))
            A("v_lshlrev_b32 v2, 13, v1")
            A("s_lshl_b32 s38, s31, 2")
            A("s_add_u32 s39, s38, 32768")
            A("s_lshl_b32 s38, s31, 4")
            A("s_mov_b64 exec, 15")
            A("buffer_store_dword %s, v2, s[52:55], s39 offen sc1" % v(TS))
            A("s_mov_b64 exec, 1")
            A("buffer_store_dwordx4 v[20:23], v20, s[52:55], s38 offen sc1")
            A("s_mov_b64 exec, -1")
            ops.extend(["st"] * 2)
            emit(items("post"))
            def period(p, vm, do_a, do_w, rd=None, extra=None, g=g, NB=NB):
                n = 4 * NB
                A("s_waitcnt vmcnt(%d) lgkmcnt(0)" % vm)
                A("s_barrier")
                if extra: extra()
                if rd is None:
                    rd = reads((p + 1) & 1, (p + 1) & 3, (p + 1) & 1)
                if p < 0:
                    emit(rd + items(-1))
                    return
                if do_a == "sched":
                    dm = items(p)
                else:
                    dm = (w_st(p & 3, "W%d" % (p + 4)) if do_w else []) + (a_half(1 - (p & 1), "A%d" % ((p + 5) // 2)) if do_a else [])
                if p & 1 == 0:
                    upd = ["v_add_u32 v8, s50, v8", "v_add_u32 v10, s50, v10"]
                else:
                    upd = ["v_add_u32 v9, s50, v9", "v_add_u32 v11, s50, v11", "s_add_u32 s47, s47, s50",
                           "s_cmp_eq_u32 s47, 65536", "s_cselect_b32 s50, 0xffff0000, s51"]
                slots = [[] for _ in range(n)]
                for i, f in enumerate(rd):
                    slots[(i * (n - 4)) // len(rd)].append(f)
                for i, f in enumerate(dm):
                    slots[min(((2 * i + 1) * n) // (2 * len(dm)), n - 1)].append(f)
                slots[n - 2].append(upd)
                for i, m in enumerate(g.mfmas(p & 1)):
                    A(m if p else m[:m.rindex(",")] + ", 0")
                    for f in slots[i]:
                        for ins in f: A(ins)
            L = 2 if role else 4
            period(-1, younger(["A0", "W0"]), False, False)
            st(A, "p0")
            def cs_mfma():
                for i in range(8):
                    A("v_mfma_f32_16x16x32_bf16 %s, v[12:15], %s, %s" % (v(SD, 4), v(SL + 4 * i, 4), v(SD, 4) if i else "0"))
                A("s_lshl_b32 s38, s28, 10")
                A("s_add_u32 s38, s38, %d" % K1_SP)
                A("v_add_u32 v2, s38, v19")
            def cs_red():
                if True:
                    lab = A.newlabel("csr")
                    A("s_cmp_lg_u32 s28, 7")
                    A("s_cbranch_scc1 %s" % lab)
                    A("v_lshrrev_b32 v2, 3, v1")
                    A("v_lshlrev_b32 v2, 4, v2")
                    A("v_bfe_u32 v7, v1, 2, 1")
                    A("v_lshl_add_u32 v2, v7, 8, v2")
                    A("v_and_b32 v7, 3, v1")
                    A("v_lshl_add_u32 v2, v7, 2, v2")
                    A("v_add_u32 v2, %d, v2" % K1_SP)
                    for i in range(16):
                        A("ds_read_b32 %s, v2 offset:%d" % (v(SL + i), (i >> 1) * 1024 + (i & 1) * 128))
                    A("s_lshr_b32 s38, s2, 1")
                    A("s_lshl_b32 s38, s38, 8")
                    A("s_and_b32 s39, s2, 1")
                    A("s_mul_i32 s39, s39, 32768")
                    A("s_add_u32 s38, s38, s39")
                    A("s_add_u32 s38, s38, %d" % CSO)
                    A("v_lshlrev_b32 v2, 2, v1")
                    A("s_waitcnt lgkmcnt(0)")
                    for st in (8, 4, 2, 1):
                        for i in range(st):
                            A("v_add_f32 %s, %s, %s" % (v(SL + i), v(SL + i), v(SL + i + st)))
                    A("buffer_store_dword %s, v2, s[52:55], s38 offen sc1" % v(SL))
                    A.label(lab)
            for p in range(8):
                need = ["W%d" % (p + 1), "A%d" % ((p + 1) // 2)] + (["pf", "st"] if p == 6 else [])
                period(p, younger(need), "sched", True, extra=cs_mfma if p == 6 else cs_red if (p == 7 and role) else None)
                if p == 6: A("ds_write_b128 v2, %s" % v(SD, 4))
                if p == 3: st(A, "p4")
            assert younger(["W9", "A4"]) >= 2 * L or role
            if TOUCH == "early": w2touch(A, 14)
            lab = A.newlabel("k1loop")
            A("s_mov_b32 s44, 5")
            A.label(lab)
            for p in range(4, 8):
                period(p, 2 * L, True, True)
            if role == 1:
                l2 = A.newlabel("sig")
                A("s_lshl_b32 s38, s44, 3")
                A("s_add_u32 s38, s38, s28")
                A("s_cmp_lg_u32 s38, %d" % (5 * 8 + 7))
                A("s_cbranch_scc1 %s" % l2)
                A("v_mov_b32 v12, 1")
                A("v_mov_b32 v13, 0")
                A("s_mov_b64 exec, 1")
                A("buffer_atomic_add v12, v13, s[56:59], 0 offen sc1")
                A("s_mov_b64 exec, -1")
                A.label(l2)
            A("s_sub_u32 s44, s44, 1")
            A("s_cmp_lg_u32 s44, 0")
            A("s_cbranch_scc1 %s" % lab)
            def poll0():
                A("v_mov_b32 v3, 0")
                A("buffer_load_dword v4, v3, s[56:59], 0 offen sc1")
            def fetch(typ=typ):
                l1, l2, l3 = A.newlabel("pa"), A.newlabel("pb"), A.newlabel("pc")
                A("s_cmp_lg_u32 s28, 7")
                A("s_cbranch_scc1 %s" % l3)
                A.label(l1)
                A("v_readfirstlane_b32 s38, v4")
                A("s_cmp_ge_u32 s38, 256")
                A("s_cbranch_scc1 %s" % l2)
                A("buffer_load_dword v4, v3, s[56:59], 0 offen sc1")
                A("s_waitcnt vmcnt(0)")
                A("s_branch %s" % l1)
                A.label(l2)
                A("s_lshl_b32 s38, s29, 10")
                A("s_add_u32 s38, s38, %d" % (32768 if typ == "qkv" else 49152))
                A("s_add_u32 s41, s38, %d" % (8192 - 1024))
                A("s_mov_b32 m0, %d" % K1_SP)
                if typ == "qkv":
                    A("v_lshrrev_b32 v2, 4, v1")
                    A("v_and_b32 v7, 0xf0, v19")
                    A("v_lshl_add_u32 v2, v2, 12, v7")
                    A("s_lshl_b32 s39, s30, 8")
                    A("s_add_u32 s39, s39, %d" % (CSO - 2048))
                else:
                    A("v_mov_b32 v2, v19")
                    A("s_mul_i32 s39, s30, 896")
                    A("s_add_u32 s39, s39, %d" % (CSO - 2048 + 3072 * 4))
                A("s_add_u32 s40, s39, %d" % (32768 - 1024))
                A("buffer_load_dwordx4 v19, s[52:55], s38 offen sc1 lds")
                A("buffer_load_dwordx4 v19, s[52:55], s41 offen offset:1024 sc1 lds")
                A("buffer_load_dwordx4 v2, s[52:55], s39 offen offset:2048 sc1 lds")
                A("buffer_load_dwordx4 v2, s[52:55], s40 offen offset:3072 sc1 lds")
                if typ == "w1":
                    srd(A, 16, 26, 3584 * 2)
                    A("s_mov_b32 m0, %d" % (K1_SP + 4096))
                    A("s_mul_i32 s39, s30, 448")
                    A("buffer_load_dwordx4 v19, s[16:19], s39 offen lds")
                A.label(l3)
            def par_addr(typ=typ):
                if TOUCH == "late": w2touch(A, 3)
                A("s_lshl_b32 s38, s32, 7")
                A("s_sub_u32 s39, %d, s38" % (K1_SP + 7 * 128))
                A("s_add_u32 s38, s38, %d" % K1_SP)
                A("v_and_b32 v2, 15, v1")
                A("v_and_b32 v7, 48, v1")
                A("v_lshl_add_u32 v12, v2, 2, s38")
                A("v_lshl_add_u32 v13, v2, 2, s39")
                if typ == "qkv":
                    A("v_add_u32 v14, s38, v7")
                    A("v_add_u32 v15, s39, v7")
                    A("s_lshl_b32 s38, s33, 7")
                    A("s_add_u32 s38, s38, %d" % (K1_SP + 2048))
                    A("v_add_u32 v5, s38, v7")
                    A("v_lshl_add_u32 v6, v2, 2, s38")
                else:
                    A("s_lshl_b32 s38, s33, 9")
                    A("s_add_u32 s38, s38, %d" % (K1_SP + 2048))
                    A("v_add_u32 v5, s38, v7")
                    A("v_lshrrev_b32 v7, 1, v7")
                    A("s_lshl_b32 s38, s33, 8")
                    A("s_add_u32 s38, s38, %d" % (K1_SP + 4096))
                    A("v_add_u32 v14, s38, v7")
                    A("v_and_b32 v2, 16, v1")
                    A("v_lshrrev_b32 v7, 3, v1")
                    A("v_and_b32 v7, 4, v7")
                    A("v_add_u32 v2, v2, v7")
                    A("s_lshl_b32 s38, s33, 5")
                    A("s_add_u32 s38, s38, %d" % (K1_SP + 2048 + 384))
                    A("v_lshl_add_u32 v6, v2, 2, s38")
                    A("s_lshl_b32 s38, s33, 4")
                    A("s_add_u32 s38, s38, %d" % (K1_SP + 4096 + 192))
                    A("v_lshl_add_u32 v15, v2, 1, s38")
            pr = [["ds_read_b32 %s, %s offset:%d" % (v(EX + 2 * mb + h), v(12 + (mb >> 1)), (mb & 1) * 64 + h * 1024)] for mb in range(4) for h in range(2)]
            if typ == "qkv":
                C1 = CR + 18
                for h, c in enumerate((CR, C1)):
                    pr += [["ds_read_b128 %s, v5 offset:%d" % (v(c + 4 * t, 4), h * 1024 + (t >> 1) * 256 + (t & 1) * 64)] for t in range(4)]
                    pr += [["ds_read_b32 %s, v6 offset:%d" % (v(c + 16 + t), h * 1024 + 512 + t * 64)] for t in range(2)]
                pr += [["ds_read_b128 %s, %s offset:%d" % (v(EX + 8 + 8 * mb + 4 * h, 4), v(14 + (mb >> 1)), (mb & 1) * 64 + h * 1024)]
                       for mb in range(4) for h in range(2)]
            else:
                C1 = EX + 8
                for h, c in enumerate((CR, C1)):
                    pr += [["ds_read_b128 %s, %s offset:%d" % (v(c + 4 * t, 4), "v5" if t < 6 else "v6", h * 1024 + (t * 64 if t < 6 else 0))] for t in range(7)]
                pr += [["ds_read_b64 %s, %s offset:%d" % (v(CR + 28 + 2 * t, 2), "v14" if t < 6 else "v15", t * 32 if t < 6 else 0)] for t in range(7)]
            period(28, 2 * L, False, False, extra=poll0 if role else None)
            period(29, 0 if role else L, False, False, extra=fetch if role else None)
            period(30, 63 if role else 0, False, False, extra=par_addr)
            period(31, 2 if TOUCH == "late" else 0, False, False, rd=pr)
            if role == 0:
                A("s_branch L_k1_%s_epi" % typ)
        A.label("L_k1_%s_epi" % typ)
        st(A, "loop")
        A("s_waitcnt lgkmcnt(0)")
        for i in range(0, 18 if typ == "qkv" else 28, 2):
            A("v_pk_add_f32 %s, %s, %s" % (v(CR + i, 2), v(CR + i, 2), v(C1 + i, 2)))
        ND = 240 if typ == "qkv" else 208
        for mb in range(4):
            A("v_mov_b32 %s, %s" % (v(ND + 2 * mb), v(EX + 2 * mb + 1)))
            A("v_mov_b32 %s, %s" % (v(ND + 2 * mb + 1), v(EX + 2 * mb + 1)))
            A("v_mov_b32 %s, %s" % (v(EX + 2 * mb + 1), v(EX + 2 * mb)))
        if typ == "qkv":
            for i in range(4):
                A("v_mov_b32 %s, %s" % (v(ND + 8 + i), v(CR + 16 + i // 2)))
        srd(A, 12, 6, ACT_BYTES, WS_ACT)
        A("s_lshl_b32 s39, s29, 14")
        A("s_lshl_b32 s40, s32, 11")
        A("s_sub_u32 s41, %d, s40" % (7 * 2048))
        A("s_add_u32 s40, s40, s39")
        A("s_add_u32 s41, s41, s39")
        if typ == "qkv":
            T = 152
            def norm(mb, nb):
                c = g.accr(mb, nb)
                for i in (0, 2):
                    if nb < 4:
                        A("v_pk_mul_f32 %s, %s, %s" % (v(T + i, 2), v(CR + 4 * nb + i, 2), v(ND + 2 * mb, 2)))
                    else:
                        A("v_pk_mul_f32 %s, %s, %s" % (v(T + i, 2), v(EX + 12 + 8 * mb + i, 2), v(ND + 8 + 2 * (nb - 4), 2)))
                for i in (0, 2):
                    if nb < 4:
                        A("v_pk_fma_f32 %s, %s, %s, %s" % (v(c + i, 2), v(c + i, 2), v(EX + 2 * mb, 2), v(T + i, 2)))
                    else:
                        A("v_pk_fma_f32 %s, %s, %s, %s" % (v(c + i, 2), v(c + i, 2), v(EX + 8 + 8 * mb + i, 2), v(T + i, 2)))
            def pack(d, c0, c1):
                for h, c in enumerate((c0, c1)):
                    A("v_cvt_pk_bf16_f32 %s, %s, %s" % (v(d + 2 * h), v(c), v(c + 1)))
                    A("v_cvt_pk_bf16_f32 %s, %s, %s" % (v(d + 2 * h + 1), v(c + 2), v(c + 3)))
            srd(A, 16, 6, 8 * MB_, WS_KV)
            A("s_lshl_b32 s34, s29, 4")
            A("s_add_u32 s34, s34, s30")
            A("s_lshl_b32 s35, s34, 16")
            A("s_lshl_b32 s38, s33, 15")
            A("s_add_u32 s38, s38, s35")
            A("s_lshl_b32 s39, s32, 12")
            A("s_sub_u32 s43, %d, s39" % (7 * 4096))
            A("s_add_u32 s42, s38, s39")
            A("s_add_u32 s38, s38, s43")
            A("s_lshl_b32 s36, s33, 16")
            A("s_add_u32 s39, s39, s36")
            A("s_add_u32 s43, s43, s36")
            A("v_add_u32 v12, s43, v19")
            A("v_add_u32 v13, s39, v19")
            for grp in range(2):
                for k in range(4):
                    d = T + 4 + 4 * (grp * 4 + k)
                    if k < 2:
                        mb = 2 * grp + k
                        norm(mb, 2); norm(mb, 3)
                        pack(d, g.accr(mb, 2), g.accr(mb, 3))
                    else:
                        norm(2 * grp, 2 + k); norm(2 * grp + 1, 2 + k)
                        pack(d, g.accr(2 * grp, 2 + k), g.accr(2 * grp + 1, 2 + k))
                    A("buffer_store_dwordx4 %s, v19, s[16:19], %s offen offset:%d sc1" % (v(d, 4), "s38" if grp else "s42", k * 1024))
                    A("ds_write_b128 %s, %s offset:%d" % (v(12 + grp), v(d, 4), k * 1024))
            QR, OA, MA = 192, 208, 14
            for mb in range(4):
                norm(mb, 0); norm(mb, 1)
            for mb in range(4):
                pack(QR + 4 * mb, g.accr(mb, 0), g.accr(mb, 1))
            A("s_waitcnt lgkmcnt(0)")
            A("s_barrier")
            st(A, "epi")
            A("v_and_b32 v2, 15, v1")
            A("v_lshrrev_b32 v7, 4, v1")
            A("v_lshlrev_b32 v7, 2, v7")
            A("s_mov_b64 s[50:51], s[40:41]")
            for r in range(4):
                A("v_add_u32 v8, %d, v7" % r)
                A("v_cmp_lt_u32 %s, v2, v8" % s(36 + 2 * r, 2))
            A("s_mov_b64 s[44:45], -1")
            A("s_mov_b64 s[46:47], 0")
            A("v_mov_b32 v7, 0xff800000")
            for i in range(4):
                A("v_mov_b32 %s, 0x3f803f80" % v(188 + i))
                A("v_mov_b32 %s, v7" % v(MA + i))
            for i in range(48):
                A("v_mov_b32 %s, 0" % v(OA + i))
            A("s_mov_b32 s48, %s" % f32((32 ** -0.5) * math.log2(math.e)))
            A("s_mov_b32 s49, s48")
            A("s_add_u32 s20, s32, 1")
            A("s_sub_u32 s21, 8, s32")
            A("s_mov_b32 s22, 0")
            A("s_mov_b32 s31, 1")
            A("s_mov_b32 s68, 0")
            A("s_lshl_b32 s27, s29, 11")
            A("s_add_u32 s27, s27, %d" % (16384 + 64))
            A("s_lshl_b32 s23, s34, 7")
            A("s_add_u32 s23, s23, 16384")
            A("v_mov_b32 v18, 0")
            A("v_mov_b32 v20, 1")
            A("s_waitcnt vmcnt(0)")
            A("s_mov_b64 exec, 1")
            A("buffer_atomic_add v20, v18, s[52:55], s23 offen sc1")
            A("s_mov_b64 exec, -1")
            st(A, "at0")
            stubs = []
            A.label("L_k1_part")
            attn_body(A, "atB", QR + 8, OA + 24, MA + 2, 13, 21, stubs)
            A("s_cmp_lg_u32 s22, 0")
            A("s_cbranch_scc1 L_k1_g2pf")
            A("s_cmp_eq_u32 s29, 0")
            A("s_cbranch_scc1 L_k1_nofetch")
            st(A, "at1")
            A("s_sub_u32 s23, s23, 2048")
            A.label("L_k1_kvpoll")
            A("buffer_load_dword v20, v18, s[52:55], s23 offen sc1")
            A("s_waitcnt vmcnt(0)")
            A("v_readfirstlane_b32 s24, v20")
            A("s_cmp_lt_u32 s24, 8")
            A("s_cbranch_scc1 L_k1_kvpoll")
            st(A, "at2")
            A("s_lshl_b32 s24, s28, 13")
            A("s_add_u32 s25, s35, s24")
            A("s_sub_u32 s25, s25, 0x100000")
            A("s_lshl_b32 s26, s33, 15")
            A("s_add_u32 s24, s24, s26")
            for h in range(2):
                A("s_add_u32 m0, s24, %d" % (32768 + h * 4096))
                A("s_add_u32 s26, s25, %d" % (h * 4096))
                for i in range(4):
                    A("buffer_load_dwordx4 v19, s[16:19], s26 offen offset:%d sc1 lds" % (i * 1024))
            A.label("L_k1_nofetch")
            A("buffer_load_dword v22, v18, s[52:55], s27 offen sc1")
            attn_body(A, "atA", QR, OA, MA, 12, 20, stubs)
            A("s_cmp_lg_u32 s22, 0")
            A("s_cbranch_scc1 L_k1_atdone")
            A("s_cmp_eq_u32 s29, 0")
            A("s_cbranch_scc1 L_k1_atdone")
            st(A, "at3")
            A("s_mov_b32 s22, 1")
            for r in range(6):
                A("s_not_b64 %s, %s" % (s(36 + 2 * r, 2), s(36 + 2 * r, 2)))
            A("s_mov_b32 s24, s20")
            A("s_mov_b32 s20, s21")
            A("s_mov_b32 s21, s24")
            A("v_add_u32 v8, 32768, v12")
            A("v_add_u32 v12, 32768, v13")
            A("v_mov_b32 v13, v8")
            A("s_waitcnt vmcnt(0)")
            A("s_barrier")
            st(A, "at4")
            A("s_branch L_k1_part")
            A.label("L_k1_g2pf")
            A("s_cmp_lt_u32 s28, 4")
            A("s_cbranch_scc1 L_k1_nofetch")
            A("buffer_load_dword v22, v18, s[52:55], s27 offen sc1")
            g2_loader_setup(A)
            A("s_waitcnt vmcnt(0)")
            A("v_readfirstlane_b32 s24, v22")
            A("s_cmp_lt_u32 s24, 16")
            A("s_cbranch_scc1 L_k1_nofetch")
            A("s_mov_b32 s68, 1")
            for sl in range(2):
                g2_dma_w(A, sl)
                g2_dma_a(A, sl)
            A("s_branch L_k1_nofetch")
            for lab, tail, back in stubs:
                A.label(lab)
                for i in tail: A(i)
                A("s_branch %s" % back)
            A.label("L_k1_atdone")
            A("s_lshl_b32 s24, s30, 1")
            A("s_add_u32 s24, s24, s33")
            A("s_add_u32 s24, s24, 112")
            A("s_lshl_b32 s24, s24, 17")
            A("s_add_u32 s50, s50, s24")
            A("s_add_u32 s51, s51, s24")
            A("s_nop 4")
            for q in (2, 3, 0, 1):
                o = OA + 12 * q
                A("v_rcp_f32 v8, %s" % v(o + 8))
                A("s_nop 0")
                for i in range(8):
                    A("v_mul_f32 %s, %s, v8" % (v(o + i), v(o + i)))
                pack(28 + 4 * q, o, o + 4)
                A("buffer_store_dwordx4 %s, v19, s[12:15], %s offen offset:%d sc1" % (v(28 + 4 * q, 4), s(50 + (q >> 1)), (q & 1) * 1024))
            A("s_barrier")
            A("s_cmp_lt_u32 s28, 4")
            A("s_cbranch_scc1 L_g2_q0")
            A("s_cmp_eq_u32 s68, 0")
            A("s_cbranch_scc1 L_g2_q1")
            for sl in range(2, 4):
                g2_dma_w(A, sl)
                g2_dma_a(A, sl)
            A("s_waitcnt vmcnt(20)")
            A("s_branch L_g2_com")
            A.label("L_g2_q1")
            g2_loader_setup(A)
            for sl in range(G2R): g2_dma_w(A, sl)
            A("s_waitcnt vmcnt(20)")
            A("s_branch L_g2_com")
            A.label("L_g2_q0")
            A("s_waitcnt vmcnt(0)")
            A("s_branch L_g2_com")
        else:
            st(A, "epi")
            A("s_mov_b32 s31, 0")
            A("s_mov_b32 s68, 0")
            BR, T = EX + 8, FR0 + 44
            for t in range(7):
                b = CR + 28 + 2 * t
                A("v_lshlrev_b32 %s, 16, %s" % (v(BR + 4 * t), v(b)))
                A("v_and_b32 %s, 0xffff0000, %s" % (v(BR + 4 * t + 1), v(b)))
                A("v_lshlrev_b32 %s, 16, %s" % (v(BR + 4 * t + 2), v(b + 1)))
                A("v_and_b32 %s, 0xffff0000, %s" % (v(BR + 4 * t + 3), v(b + 1)))
            c0 = -2.0 * math.sqrt(2.0 / math.pi) * math.log2(math.e)
            for i in range(2):
                A("v_mov_b32 %s, %s" % (v(8 + i), f32(c0)))
                A("v_mov_b32 %s, %s" % (v(12 + i), f32(c0 * 0.044715)))
                A("v_mov_b32 %s, 1.0" % v(216 + i))
            A("s_mul_i32 s38, s30, 7")
            A("s_lshl_b32 s38, s38, 17")
            A("s_add_u32 s40, s40, s38")
            A("s_add_u32 s41, s41, s38")
            A("s_lshl_b32 s39, s33, 9")
            A("s_add_u32 s39, s39, 0x%x" % (3 << 17))
            A("s_add_u32 s42, s40, s39")
            A("s_add_u32 s43, s41, s39")
            A("s_lshl_b32 s39, s33, 19")
            A("s_add_u32 s40, s40, s39")
            A("s_add_u32 s41, s41, s39")
            A("v_and_b32 v10, 0xf0, v19")
            A("v_and_b32 v2, 16, v1")
            A("v_lshl_add_u32 v10, v2, 6, v10")
            A("v_and_b32 v2, 32, v1")
            A("v_lshl_add_u32 v10, v2, 3, v10")
            def act2(blks, d):
                P = [(g.accr(mb, nb) + i, T + 4 * h + i, mb, nb, i) for h, (mb, nb) in enumerate(blks) for i in (0, 2)]
                for c, t, mb, nb, i in P:
                    A("v_pk_fma_f32 %s, %s, %s, %s" % (v(t, 2), v(CR + 4 * nb + i, 2), v(ND + 2 * mb, 2), v(BR + 4 * nb + i, 2)))
                for c, t, mb, nb, i in P:
                    A("v_pk_fma_f32 %s, %s, %s, %s" % (v(c, 2), v(c, 2), v(EX + 2 * mb, 2), v(t, 2)))
                for c, t, mb, nb, i in P:
                    A("v_pk_mul_f32 %s, %s, %s" % (v(t, 2), v(c, 2), v(c, 2)))
                for c, t, mb, nb, i in P:
                    A("v_pk_fma_f32 %s, %s, v[12:13], v[8:9]" % (v(t, 2), v(t, 2)))
                for c, t, mb, nb, i in P:
                    A("v_pk_mul_f32 %s, %s, %s" % (v(t, 2), v(t, 2), v(c, 2)))
                for i in range(8): A("v_exp_f32 %s, %s" % (v(T + i), v(T + i)))
                for c, t, mb, nb, i in P:
                    A("v_pk_add_f32 %s, %s, v[216:217]" % (v(t, 2), v(t, 2)))
                for i in range(8): A("v_rcp_f32 %s, %s" % (v(T + i), v(T + i)))
                for c, t, mb, nb, i in P:
                    A("v_pk_mul_f32 %s, %s, %s" % (v(c, 2), v(c, 2), v(t, 2)))
                for k_, (c, t, mb, nb, i) in enumerate(P):
                    A("v_cvt_pk_bf16_f32 %s, %s, %s" % (v(d + k_), v(c), v(c + 1)))
            k = 0
            for pr in range(3):
                for mb in range(4):
                    d = T + 8 + 4 * (k % 6); k += 1
                    act2([(mb, 2 * pr), (mb, 2 * pr + 1)], d)
                    A("buffer_store_dwordx4 %s, v19, s[12:15], %s offen offset:%d sc1" % (v(d, 4), s(40 + (mb >> 1)), (mb & 1) * 1024))
                if pr < 2:
                    A("s_add_u32 s40, s40, 0x20000")
                    A("s_add_u32 s41, s41, 0x20000")
            for h in range(2):
                d = T + 8 + 4 * (k % 6); k += 1
                act2([(2 * h, 6), (2 * h + 1, 6)], d)
                A("s_nop 1")
                A("v_permlane16_swap_b32 %s, %s" % (v(d), v(d + 2)))
                A("v_permlane16_swap_b32 %s, %s" % (v(d + 1), v(d + 3)))
                A("buffer_store_dwordx4 %s, v10, s[12:15], %s offen sc1" % (v(d, 4), s(42 + h)))
            A("s_lshl_b32 s27, s29, 11")
            A("s_add_u32 s27, s27, %d" % (16384 + 64))
            A("s_lshr_b32 s26, s30, 2")
            A("s_lshl_b32 s26, s26, 7")
            A("s_add_u32 s26, s26, 256")
            A("v_mov_b32 v22, 0")
            A("s_cmp_lt_u32 s28, 4")
            A("s_cbranch_scc1 L_g2_p0")
            g2_loader_setup(A)
            for sl in range(G2R): g2_dma_w(A, sl)
            A("s_waitcnt vmcnt(16)")
            A("s_branch L_g2_p1")
            A.label("L_g2_p0")
            A("v_mov_b32 v23, 1")
            A("v_mul_lo_u32 v21, v1, s26")
            A("s_waitcnt vmcnt(0)")
            A.label("L_g2_p1")
            A("s_barrier")
            A("s_cmp_lg_u32 s28, 0")
            A("s_cbranch_scc1 L_g2_com")
            A("s_mov_b64 exec, 3")
            A("buffer_atomic_add v23, v21, s[52:55], s27 offen sc1")
            A("s_mov_b64 exec, -1")
    gen_g2f(A)
    A.label("L_k1_done")
    A("s_endpgm")
    kernel_desc(A, name, 256, 96)
    return "; @launch %sgrid=(256,1,1) block=(512,1,1) lds=163840" % (("kernel=%s " % name) if os.environ.get("LIST") else "")

def main2(out):
    A = Asm()
    A.raw('.amdgcn_target "amdgcn-amd-amdhsa--gfx950"')
    ls = [gen_k1(A)]
    hdr = "; generated by dev/kf.py\n" + "\n".join(ls) + "\n"
    open(out, "w").write(hdr + A.text())

if __name__ == "__main__":
    main2(sys.argv[1] if len(sys.argv) > 1 else "cdna_kernels/%s.s" % NAME)
```
